```python
import torch

def _softmax(x, axis=-1):
    return torch.softmax(x, dim=axis)
def _gelu(x):
    return torch.nn.functional.gelu(x, approximate="tanh")
def _silu(x):
    return torch.nn.functional.silu(x)
def _sigmoid(x):
    return torch.sigmoid(x)
def _layernorm(x, axis=-1, eps=1e-5):
    m = x.mean(dim=axis, keepdim=True)
    v = x.var(dim=axis, keepdim=True, unbiased=False)
    return (x - m) / torch.sqrt(v + eps)
def _scatter_add(tgt, idx, src, axis=0):
    return tgt.clone().index_add_(axis, idx, src)
def _segment_sum(src, seg, n):
    out = torch.zeros((n,) + src.shape[1:], dtype=src.dtype)
    return out.index_add_(0, seg, src)
def _pad(x, pw):
    flat = tuple(v for pair in reversed(pw) for v in pair)
    return torch.nn.functional.pad(x, flat)

kernel_name = 'concat_heads__softmax_full_mha__linear_kernel_hedgehog__prompt'

def setup_inputs():

    _w = (lambda a: (lambda t: t.to(torch.bfloat16) if t.is_floating_point() else t)(torch.as_tensor(a)))
    def _A_setup():
        B, S, D = 1, 2048, 448
        return {
            "x": _w((lambda *s: torch.randn(*s, dtype=torch.bfloat16) * 0.4)(B, S, D)),
            "wqkv": _w((lambda *s: torch.randn(*s, dtype=torch.bfloat16) * 0.4)(D, 3 * D)),
            "wo": _w((lambda *s: torch.randn(*s, dtype=torch.bfloat16) * 0.05)(D, D)),
        }
    _A_in = _A_setup()

    def _B_setup():
        B, S, D, H = 1, 2048, 448, 16
        Dh = D // H
        return {
            "x": _w((lambda *s: torch.randn(*s, dtype=torch.bfloat16) * 0.8)(B, S, D)),
            "wqkv": _w((lambda *s: torch.randn(*s, dtype=torch.bfloat16) * 1.6)(D, 3 * D)),
            "w_phi": _w((lambda *s: torch.randn(*s, dtype=torch.bfloat16) * 1.6)(H, Dh, Dh) * (Dh ** -0.5)),
            "wo": _w((lambda *s: torch.randn(*s, dtype=torch.bfloat16) * 0.1)(D, D)),
        }
    _B_in = _B_setup()

    return {
        "A_x": _A_in["x"],
        "A_wqkv": _A_in["wqkv"],
        "A_wo": _A_in["wo"],
        "B_x": _B_in["x"],
        "B_wqkv": _B_in["wqkv"],
        "B_w_phi": _B_in["w_phi"],
        "B_wo": _B_in["wo"],
    }

def reference(A_x, A_wqkv, A_wo, B_x, B_wqkv, B_w_phi, B_wo):
    def _A_ref(x, wqkv, wo):
        B, S, D = x.shape
        H = 16; Dh = D // H
        qkv = (lambda x, *d: x.permute(*d))((x @ wqkv).reshape(B, S, 3, H, Dh), 2, 0, 3, 1, 4)
        q, k, v = qkv[0], qkv[1], qkv[2]
        scale = Dh ** -0.5
        scores = torch.einsum("bhqd,bhkd->bhqk", q, k) * scale
        p = _softmax(scores, axis=-1)
        o = torch.einsum("bhqk,bhkd->bhqd", p, v)
        return (lambda x, *d: x.permute(*d))(o, 0, 2, 1, 3).reshape(B, S, D) @ wo

    def _B_ref(x, wqkv, w_phi, wo):
        B, S, D = x.shape
        H = 16; Dh = D // H
        qkv = (lambda x, *d: x.permute(*d))((x @ wqkv).reshape(B, S, 3, H, Dh), 2, 0, 3, 1, 4)
        q, k, v = qkv[0], qkv[1], qkv[2]
        pq = torch.einsum("bhsd,hdf->bhsf", q, w_phi)
        pk = torch.einsum("bhsd,hdf->bhsf", k, w_phi)
        phi_q = torch.concatenate([_softmax(pq, axis=-1), _softmax(-pq, axis=-1)], axis=-1)
        phi_k = torch.concatenate([_softmax(pk, axis=-1), _softmax(-pk, axis=-1)], axis=-1)
        kv = torch.einsum("bhsf,bhsd->bhfd", phi_k, v)
        z  = torch.einsum("bhsf->bhf", phi_k)
        num = torch.einsum("bhqf,bhfd->bhqd", phi_q, kv)
        den = torch.einsum("bhqf,bhf->bhq", phi_q, z)[..., None] + 1e-6
        o = num / den
        return (lambda x, *d: x.permute(*d))(o, 0, 2, 1, 3).reshape(B, S, D) @ wo

    a = _A_ref(A_x, A_wqkv, A_wo)
    b = _B_ref(B_x, B_wqkv, B_w_phi, B_wo)
    return torch.concatenate([a, b], axis=-1)
```

```python
import re

def vr(a, n=1):
    return f'v{a}' if n == 1 else f'v[{a}:{a+n-1}]'
def sr(a, n=1):
    return f's{a}' if n == 1 else f's[{a}:{a+n-1}]'

class Asm:
    def __init__(self):
        self.lines = []
        self.nlab = 0
    def __call__(self, text):
        for l in text.split('\n'):
            l = l.strip()
            if l: self.lines.append(l)
    def label(self, name):
        self.lines.append(name + ':')
    def newlabel(self, base='L'):
        self.nlab += 1
        return f'{base}_{self.nlab}'
    def comment(self, t):
        self.lines.append('; ' + t)
    def text(self):
        out = []
        for l in self.lines:
            if l.endswith(':') or l.startswith('.') : out.append(l)
            else: out.append('    ' + l)
        return '\n'.join(out) + '\n'

REG = re.compile(r'\b([vsa])(?:(\d+)|\[(\d+):(\d+)\])')
def regs_of(op):
    out = set()
    for m in REG.finditer(op):
        k = m.group(1)
        if m.group(2) is not None: out.add((k, int(m.group(2))))
        else:
            for i in range(int(m.group(3)), int(m.group(4)) + 1): out.add((k, i))
    if re.search(r'\bvcc\b', op): out.add(('s', 'vcc'))
    if re.search(r'\bexec\b', op): out.add(('s', 'exec'))
    if re.search(r'\bm0\b', op): out.add(('s', 'm0'))
    return out

TRANS = ('v_exp_', 'v_log_', 'v_rcp_', 'v_rsq_', 'v_sqrt_', 'v_sin_', 'v_cos_')
def parse(line):
    line = line.split(';')[0].strip()
    if not line or line.endswith(':') or line.startswith('.'): return None
    sp = line.split(None, 1)
    mn = sp[0]; rest = sp[1] if len(sp) > 1 else ''
    ops = [o.strip() for o in re.split(r',(?![^\[]*\])', rest)] if rest else []
    d = dict(mn=mn, line=line, w=set(), r=set(), kind='other', srcc=set(), ab=set(), states=1)
    if mn == 's_nop': d['states'] = int(rest) + 1
    if mn.startswith('v_mfma') or mn.startswith('v_smfmac'):
        d['kind'] = 'mfma'
        d['w'] = regs_of(ops[0]); d['ab'] = regs_of(ops[1]) | regs_of(ops[2])
        if mn.startswith('v_smfmac'):
            d['srcc'] = regs_of(ops[0]); d['ab'] |= regs_of(ops[3])
        else: d['srcc'] = regs_of(ops[3])
        d['r'] = d['ab'] | d['srcc']
        d['passes'] = 8 if '32x32' in mn else 4
    elif mn.startswith('v_'):
        d['kind'] = 'valu'
        if mn.startswith('v_cmp'):
            d['w'] = regs_of(ops[0]); d['r'] = set().union(*[regs_of(o) for o in ops[1:]])
            if mn.startswith('v_cmpx'): d['w'].add(('s', 'exec'))
        elif mn.startswith('v_permlane') :
            d['w'] = regs_of(ops[0]) | regs_of(ops[1]); d['r'] = set(d['w']); d['perm'] = True
        else:
            d['w'] = regs_of(ops[0]); d['r'] = set().union(*[regs_of(o) for o in ops[1:]]) if len(ops) > 1 else set()
            if mn.startswith('v_fmac') or mn.startswith('v_pk_fmac'): d['r'] |= d['w']
            if '_co_' in mn: d['w'] |= regs_of(ops[1])
        d['trans'] = mn.startswith(TRANS)
        d['rdlane'] = mn.startswith('v_readlane') or mn.startswith('v_readfirstlane')
        d['dpp'] = 'quad_perm' in line or 'row_' in line
    elif mn.startswith('buffer_') or mn.startswith('global_'):
        d['kind'] = 'vmem'
        allr = set().union(*[regs_of(o) for o in ops])
        isload = '_load_' in mn and not re.search(r'\blds\b', line)
        if isload:
            d['w'] = regs_of(ops[0]); d['r'] = set().union(*[regs_of(o) for o in ops[1:]])
        else: d['r'] = allr
        if re.search(r'\blds\b', line): d['r'].add(('s', 'm0')); d['ldsdma'] = True
        if ('store_dwordx4' in mn or 'store_dwordx3' in mn):
            d['widestore'] = regs_of(ops[0] if mn.startswith('buffer_') else ops[1])
    elif mn.startswith('ds_'):
        d['kind'] = 'ds'
        if mn.startswith('ds_read') or '_rtn' in mn or 'permute' in mn or 'swizzle' in mn:
            d['w'] = regs_of(ops[0]); d['r'] = set().union(*[regs_of(o) for o in ops[1:]])
        else: d['r'] = set().union(*[regs_of(o) for o in ops])
    elif mn.startswith('s_'):
        d['kind'] = 'salu'
        if ops and not mn.startswith(('s_cmp', 's_cbranch', 's_branch', 's_waitcnt', 's_nop', 's_barrier', 's_sleep', 's_setprio', 's_bitcmp', 's_endpgm')):
            d['w'] = regs_of(ops[0]); d['r'] = set().union(*[regs_of(o) for o in ops[1:]]) if len(ops) > 1 else set()
            if 'saveexec' in mn: d['w'].add(('s', 'exec'))
        else:
            d['r'] = set().union(*[regs_of(o) for o in ops]) if ops else set()
    return d

def need_states(p, c):
    n = 0
    isv = lambda s: {x for x in s if x[0] in 'va'}
    iss = lambda s: {x for x in s if x[0] == 's'}
    if p['kind'] == 'valu':
        wv = isv(p['w']); ws = iss(p['w'])
        if c['kind'] == 'mfma':
            if wv & c['r']: n = max(n, 2)
            if ('s', 'exec') in ws: n = max(n, 4)
        if c['kind'] == 'valu':
            if c.get('perm') and wv & c['r']: n = max(n, 2)
            if c.get('dpp') and wv & c['r']: n = max(n, 2)
            if c.get('rdlane') and wv & c['r']: n = max(n, 1)
            if p.get('trans') and not c.get('trans') and wv & c['r']: n = max(n, 1)
            if ws & c['r']: n = max(n, 2)
        if c['kind'] == 'vmem' and ws & c['r']: n = max(n, 5)
        if c['kind'] == 'salu' and ws & c['r']: n = max(n, 1)
    if p['kind'] == 'mfma':
        ps = p['passes']
        big = {4: 8, 8: 12}[ps]; ov = {4: 6, 8: 10}[ps]; war = {4: 3, 8: 7}[ps]
        if c['kind'] == 'mfma':
            if p['w'] & c['ab']: n = max(n, big)
            if p['w'] & c['srcc']:
                if not (p['w'] == c['srcc'] and ps == c['passes']): n = max(n, ov)
            elif p['w'] & c['w'] and not (p['w'] == c['w'] and ps == c['passes']): n = max(n, ov)
        elif c['kind'] in ('valu', 'vmem', 'ds'):
            if p['w'] & (c['r'] | c['w']): n = max(n, big)
            if c['kind'] == 'valu' and p['srcc'] & c['w']: n = max(n, war)
    if p['kind'] == 'vmem' and p.get('widestore'):
        if p['widestore'] & c['w']: n = max(n, 2 if c['kind'] == 'valu' else 1)
    if p['kind'] == 'salu' and ('s', 'm0') in p['w'] and c.get('ldsdma'): n = max(n, 1)
    return n

def check_hazards(lines):
    ins = []; labels = {}
    for l in lines:
        ls = l.split(';')[0].strip()
        if ls.endswith(':'): labels[ls[:-1]] = len(ins); continue
        d = parse(l)
        if d: ins.append(d)
    bad = []
    for i, p in enumerate(ins):
        if p['kind'] not in ('valu', 'mfma', 'vmem', 'salu'): continue
        maxd = 12 if p['kind'] == 'mfma' else 5
        stack = [(i, 0)]; seen = set()
        while stack:
            j, dist = stack.pop()
            cur = ins[j]
            nxt = []
            if cur['mn'] == 's_endpgm': continue
            if cur['mn'] == 's_branch' or cur['mn'].startswith('s_cbranch'):
                t = cur['line'].split()[-1]
                if t in labels: nxt.append(labels[t])
            if cur['mn'] != 's_branch': nxt.append(j + 1)
            for k in nxt:
                if k >= len(ins) or (k, dist) in seen: continue
                seen.add((k, dist))
                c = ins[k]
                n = need_states(p, c)
                if n > dist: bad.append((p['line'], c['line'], n, dist))
                nd = dist + c['states']
                if nd < maxd: stack.append((k, nd))
    return bad
```

```python
import sys, math, struct
from asmlib import *

NAME = 'concat_heads__softmax_full_mha__linear_kernel_hedgehog__prompt'
OPT = dict(stamp=0, stop=99, wo_early=1, force_fb=0)
for a in sys.argv[2:]:
    k, v = a.split('='); OPT[k] = int(v)

MF = 'v_mfma_f32_32x32x16_bf16'
SM = 'v_smfmac_f32_32x32x32_bf16'
def f2u(x): return struct.unpack('<I', struct.pack('<f', x))[0]
LOG2E = math.log2(math.e)
QSCALE = f2u(28 ** -0.5 * LOG2E)
BIAS = 16.0

FA, FOA, FOB, FKV = 0x0, 0x4000, 0x8000, 0xA000
KVACC = 0x10000
STAMP = 0x80000
QF, KVF, OF = 0x100000, 0x400000, 0x800000
WS_SIZE = 0x1000000
L_WOB, L_GX, L_WOA, L_RED = 0, 57344, 73728, 114688
L_TX = L_RED + 16384
STG = 40960
def stg_base(s): return ((s + 2) % 4) * STG

SX, SW, SWS, SDBG, SOUT, SWOA, SWOB, SPHI = 24, 28, 32, 36, 40, 44, 48, 52
sW, sWQ, sXC, sI, sROLE, sTB, sGRP, sH, sQB, sU, sTB64 = range(56, 67)
sT = 67
sSPIN = 90
sST = 92

a = Asm()
def srd(base, lo, size):
    a(f's_mov_b32 s{base}, s{lo}\ns_mov_b32 s{base+1}, s{lo+1}\ns_mov_b32 s{base+2}, {size}\ns_mov_b32 s{base+3}, 0x20000')
nstamp = {'G': 0, 'T': 0}
def stamp(idx):
    if not OPT['stamp']: return
    a(f's_memrealtime s[88:89]\ns_waitcnt lgkmcnt(0)\ns_mov_b32 s{sST+idx}, s88')
def stamp_out():
    if not OPT['stamp']: return
    a(f's_lshl_b32 s88, s2, 3\ns_add_u32 s88, s88, s{sW}\ns_lshl_b32 s88, s88, 6\ns_add_u32 s88, s88, {STAMP}')
    a('s_mov_b64 exec, 1\nv_mov_b32 v3, 0')
    for i in range(10):
        a(f'v_mov_b32 v2, s{sST+i}\nbuffer_store_dword v2, v3, s[{SWS}:{SWS+3}], s88 offen offset:{4*i}')
    a('s_mov_b64 exec, -1')

def poll(voff, srdb, mask, vtmp, sleep=1, expect=1):
    L = a.newlabel('L_poll'); D = a.newlabel('L_polld')
    if mask == 'lo': a('s_mov_b32 exec_hi, 0')
    else: a(f's_mov_b64 exec, {mask}')
    a(f's_mov_b32 s{sSPIN}, 0x40000')
    a.label(L)
    a(f'buffer_load_dword v{vtmp}, v{voff}, s[{srdb}:{srdb+3}], 0 offen sc1\ns_waitcnt vmcnt(0)')
    a(f'v_cmp_ne_u32 vcc, {expect}, v{vtmp}\ns_cbranch_vccz {D}')
    if sleep: a(f's_sleep {sleep}')
    a(f's_sub_u32 s{sSPIN}, s{sSPIN}, 1\ns_cbranch_scc0 {L}')
    a.label(D)
    a('s_mov_b64 exec, -1')
def setflag(soff, v1, v2):
    a(f's_mov_b64 exec, 1\nv_mov_b32 v{v1}, 1\nv_mov_b32 v{v2}, 0')
    a(f'buffer_store_dword v{v1}, v{v2}, s[{SWS}:{SWS+3}], s{soff} offen sc1\ns_mov_b64 exec, -1')

a.label(NAME + '_kernel')
a(f'''
s_cmp_ge_u32 s2, 256
s_cbranch_scc1 L_end
s_load_dwordx16 s[4:19], s[0:1], 0
s_load_dwordx4 s[20:23], s[0:1], 64
v_lshrrev_b32 v1, 6, v0
v_and_b32 v0, 63, v0
v_readfirstlane_b32 s{sW}, v1
s_and_b32 s{sXC}, s2, 7
s_lshr_b32 s{sI}, s2, 3
s_and_b32 s{sROLE}, s{sI}, 1
s_lshr_b32 s{sQB}, s{sI}, 1
s_lshr_b32 s{sT}, s{sXC}, 1
s_lshl_b32 s{sT}, s{sT}, 2
s_and_b32 s{sTB}, s{sQB}, 3
s_add_u32 s{sTB}, s{sTB}, s{sT}
s_and_b32 s{sT}, s{sXC}, 1
s_lshl_b32 s{sT}, s{sT}, 2
s_lshr_b32 s{sGRP}, s{sQB}, 2
s_add_u32 s{sGRP}, s{sGRP}, s{sT}
s_and_b32 s{sWQ}, s{sW}, 3
v_lshlrev_b32 v1, 4, v0
''')
if OPT['stamp']:
    for i in range(10): a(f's_mov_b32 s{sST+i}, 0')
    a(f's_memrealtime s[88:89]\ns_waitcnt lgkmcnt(0)\ns_mov_b32 s{sST}, s88')
a(f's_cmp_lt_u32 s{sW}, 4\ns_cbranch_scc1 L_G')

vX, vWl = 4, 8
sXo, sWo, sMX, sMW = 70, 71, 74, 75
a(f'''
v_lshrrev_b32 v10, 3, v0
v_and_b32 v11, 7, v0
v_lshrrev_b32 v12, 4, v0
v_xor_b32 v13, v11, v12
v_lshlrev_b32 v13, 4, v13
v_mul_u32_u24 v14, 896, v10
v_add_u32 v{vX}, v14, v13
v_xor_b32 v{vX+1}, 64, v{vX}
v_add_u32 v{vX+1}, 6144, v{vX+1}
v_add_u32 v{vX+2}, 12288, v{vX}
v_add_u32 v{vX+3}, 12288, v{vX+1}
v_and_b32 v12, 1, v12
v_lshlrev_b32 v12, 2, v12
v_xor_b32 v13, v11, v12
v_lshlrev_b32 v15, 4, v13
v_add_u32 v15, v14, v15
v_min_u32 v13, 6, v13
v_lshlrev_b32 v13, 4, v13
v_mul_u32_u24 v14, 2688, v10
v_add_u32 v{vWl}, v14, v13
v_add_u32 v{vWl+1}, 20480, v{vWl}
s_mul_i32 s{sXo}, s{sTB}, 114688
s_mul_i32 s{sT}, s{sWQ}, 28672
s_add_u32 s{sXo}, s{sXo}, s{sT}
s_cmp_eq_u32 s{sROLE}, 0
s_cselect_b32 s{sT}, 3, 1
s_cselect_b32 s{sT+1}, 1, 8
s_mulk_i32 s{sT}, 112
s_mulk_i32 s{sT+1}, 112
s_mul_i32 s{sWo}, s{sGRP}, s{sT}
s_mul_i32 s{sT}, s{sWQ}, {16*2688}
s_add_u32 s{sWo}, s{sWo}, s{sT}
s_add_u32 s{sWo+1}, s{sWo}, s{sT+1}
s_add_u32 s{sWo+2}, s{sWo+1}, s{sT+1}
s_lshl_b32 s{sMX}, s{sWQ}, 12
s_lshl_b32 s{sMW}, s{sWQ}, 11
s_cmp_eq_u32 s{sROLE}, 0
s_waitcnt lgkmcnt(0)
s_cselect_b64 s[{SX}:{SX+1}], s[4:5], s[10:11]
s_cselect_b64 s[{SW}:{SW+1}], s[6:7], s[12:13]
s_mov_b32 s{SX+2}, 1835008
s_mov_b32 s{SX+3}, 0x20000
s_mov_b32 s{SW+2}, 1204224
s_mov_b32 s{SW+3}, 0x20000
''')
vWO = 15
def p1_issue(s):
    b = stg_base(s)
    for j in range(3):
        a(f's_add_u32 m0, s{sMW}, {b + 16384 + j*8192}')
        a('s_nop 0')
        a(f'buffer_load_dwordx4 v{vWl}, s[{SW}:{SW+3}], s{sWo+j} offen lds')
        a(f'buffer_load_dwordx4 v{vWl+1}, s[{SW}:{SW+3}], s{sWo+j} offen offset:1024 lds')
        if s < 6: a(f's_add_u32 s{sWo+j}, s{sWo+j}, {64*2688}')
    a(f's_add_u32 m0, s{sMX}, {b}')
    a('s_nop 0')
    for i in range(4):
        a(f'buffer_load_dwordx4 v{vX+i}, s[{SX}:{SX+3}], s{sXo} offen offset:{1024*i} lds')
    if s < 6: a(f's_add_u32 s{sXo}, s{sXo}, 128')
for s in range(4): p1_issue(s)
srd(SWS, 22, WS_SIZE); srd(SDBG, 20, 256); srd(SOUT, 18, 3670016); srd(SWOA, 8, 401408)
a(f'''
s_lshl_b32 s{sH}, s{sXC}, 1
s_add_u32 s{sH}, s{sH}, s{sROLE}
s_mul_i32 s{sT}, s{sI}, 37
s_lshr_b32 s{sT}, s{sT}, 8
s_mul_i32 s{sT+1}, s{sT}, 7
s_sub_u32 s{sU}, s{sI}, s{sT+1}
s_lshl_b32 s{sTB64}, s{sXC}, 2
s_add_u32 s{sTB64}, s{sTB64}, s{sT}
''')
vO, vQ, vKV, vS = 16, 80, 112, 176
vIDX, vFL = 2, 3
a(f'''
v_mov_b32 v{vIDX}, 0xdddddddd
s_add_u32 s{sT}, s{sH}, 16
s_mul_i32 s{sT}, s{sT}, 43
s_lshr_b32 s{sT}, s{sT}, 8
s_lshl_b32 s{sT}, s{sT}, 4
s_add_u32 s{sT+1}, s{sH}, 32
s_mul_i32 s{sT+1}, s{sT+1}, 43
s_lshr_b32 s{sT+1}, s{sT+1}, 8
s_lshl_b32 s{sT+1}, s{sT+1}, 4
s_mul_i32 s{sT+2}, s{sH}, 43
s_lshr_b32 s{sT+2}, s{sT+2}, 8
s_lshl_b32 s{sT+2}, s{sT+2}, 4
s_add_u32 s{sT+2}, s{sT+2}, s{sQB}
s_lshl_b32 s76, s{sWQ}, 2
v_and_b32 v10, 3, v0
v_add_u32 v10, s76, v10
v_add_u32 v{vFL}, s{sT}, v10
s_mov_b64 exec, 0xf0
v_add_u32 v{vFL}, s{sT+1}, v10
s_mov_b64 exec, 0x100
v_mov_b32 v{vFL}, s{sT+2}
s_mov_b64 exec, 0x200
v_mov_b32 v{vFL}, s{sT}
s_mov_b64 exec, -1
v_lshlrev_b32 v{vFL}, 7, v{vFL}
v_lshlrev_b32 v11, 2, v0
''')
for i in range(0, 64, 2): a(f'v_mov_b64 v[{vO+i}:{vO+i+1}], 0')
wait_p1 = [30, 20, 20, 20, 21, 11, 0]
for s in range(7):
    a(f's_waitcnt vmcnt({wait_p1[s]})')
    if s == 6:
        D = a.newlabel('L_dbgok')
        a(f'v_cmp_ne_u32 vcc, 1, v12\ns_cbranch_vccz {D}')
        poll(11, SDBG, -1, 12)
        a.label(D)
    a('s_barrier')
    if 1 <= s <= 3: p1_issue(s + 3)
    if s == 3: a(f'buffer_load_dword v12, v11, s[{SDBG}:{SDBG+3}], 0 offen sc1')
    if s == 0: stamp(1)
stamp(2)
a('s_barrier')
if OPT['stop'] == 1: a('s_branch L_fin')
sKV, sQo = 70, 71
a(f'''
s_lshl_b32 s{sT}, s{sH}, 18
s_add_u32 s{sT}, s{sT}, {KVF}
s_lshl_b32 s{sKV}, s{sWQ}, 16
s_add_u32 s{sKV}, s{sKV}, s{sT}
s_lshl_b32 s{sT+1}, s{sH}, 17
s_lshl_b32 s{sT+2}, s{sQB}, 13
s_add_u32 s{sT+1}, s{sT+1}, s{sT+2}
s_add_u32 s{sT+1}, s{sT+1}, {QF}
''')
vRW, vRR = 4, 7
for j in range(4):
    a(f's_add_u32 s{sT+2}, s{sWQ}, {j+1}\ns_and_b32 s{sT+2}, s{sT+2}, 3')
    if j < 3: a(f's_lshl_b32 s76, s{sT+2}, 12\ns_add_u32 s76, s76, {L_RED + j*16384}\nv_add_u32 v{vRW+j}, s76, v1')
    else: a(f's_lshl_b32 s76, s{sT+2}, 12\ns_add_u32 s76, s76, {L_RED}\nv_add_u32 v{vRR}, s76, v1')
    a(f's_lshl_b32 s{sT+2}, s{sT+2}, 11\ns_add_u32 s{sQo+j}, s{sT+1}, s{sT+2}')
a(f's_mov_b32 s77, {hex(f2u(-BIAS))}')
poll(vFL, SWS, 0x3ff, 10, sleep=0)
stamp(3)
kb = lambda kt: vKV + 16 * (kt % 4)
SB = lambda u: vS + 16 * (u % 4)
WSR = f's[{SWS}:{SWS+3}]'
for c in range(2): a(f'buffer_load_dwordx4 {vr(kb(3)+4*c,4)}, v1, {WSR}, s{sT} offen offset:{1024*c} sc1')
for j in range(4):
    for c in range(2): a(f'buffer_load_dwordx4 {vr(vQ+8*j+4*c,4)}, v1, {WSR}, s{sQo+j} offen offset:{1024*c} sc1')
for kt in range(3):
    for c in range(4): a(f'buffer_load_dwordx4 {vr(kb(kt)+4*c,4)}, v1, {WSR}, s{sKV} offen offset:{1024*c} sc1')
    a(f's_add_u32 s{sKV}, s{sKV}, 4096')
for j in range(4):
    a(f's_waitcnt vmcnt({18-2*j})')
    a(f'{MF} {vr(SB(j),16)}, {vr(kb(3),4)}, {vr(vQ+8*j,4)}, 0')
    a(f'{MF} {vr(SB(j),16)}, {vr(kb(3)+4,4)}, {vr(vQ+8*j+4,4)}, {vr(SB(j),16)}')
a('s_nop 5')
def tile_max(b, d):
    a(f'v_max3_f32 v{d}, v{b}, v{b+1}, v{b+2}')
    for i in range(3, 15, 2): a(f'v_max3_f32 v{d}, v{d}, v{b+i}, v{b+i+1}')
    a(f'v_max_f32 v{d}, v{d}, v{b+15}')
for j in range(4):
    tile_max(SB(j), 8 + j)
    a(f'v_mov_b32 v{240+j}, v{8+j}')
a('s_nop 0')
for j in range(4): a(f'v_permlane32_swap_b32 v{8+j}, v{240+j}')
for j in range(4): a(f'v_max_f32 v{8+j}, v{8+j}, v{240+j}')
a('s_mov_b32 exec_lo, 0')
for j in range(4): a(f'v_cvt_pk_bf16_f32 v{vQ+8*j+6}, -v{8+j}, s77')
a('s_mov_b32 exec_lo, -1')
a('s_waitcnt vmcnt(8)')
for u in range(2):
    a(f'{MF} {vr(SB(u),16)}, {vr(kb(0),4)}, {vr(vQ+8*u,4)}, 0')
    a(f'{MF} {vr(SB(u),16)}, {vr(kb(0)+4,4)}, {vr(vQ+8*u+4,4)}, {vr(SB(u),16)}')
a('s_nop 9')
stamp(4)
NKT = 16; NU = 4 * NKT
def E(u, lo, hi):
    for i in range(lo, hi): a(f'v_exp_f32 v{SB(u)+i}, v{SB(u)+i}')
def redw(j, q):
    a(f'ds_write_b128 v{vRW+j}, {vr(vO+16*j+4*q,4)} offset:{1024*q}')
for u in range(NU):
    kt, j = u >> 2, u & 3
    u2 = u + 2
    E(u, 0, 2)
    if u > 0: a(f'{SM} {vr(vO+16*((u-1)&3),16)}, {vr(kb((u-1)>>2)+12,4)}, {vr(SB(u-1)+8,8)}, v{vIDX}')
    if kt + 3 < NKT: a(f'buffer_load_dwordx4 {vr(kb(kt+3)+4*j,4)}, v1, {WSR}, s{sKV} offen offset:{j*1024} sc1')
    if u >= NU - 2: redw(u - (NU - 2), 0)
    E(u, 2, 6)
    if u2 < NU: a(f'{MF} {vr(SB(u2),16)}, {vr(kb(u2>>2),4)}, {vr(vQ+8*(u2&3),4)}, 0')
    if j == 3 and kt + 4 < NKT: a(f's_add_u32 s{sKV}, s{sKV}, 4096')
    if u >= NU - 2: redw(u - (NU - 2), 1)
    E(u, 6, 10)
    a(f'{SM} {vr(vO+16*j,16)}, {vr(kb(kt)+8,4)}, {vr(SB(u),8)}, v{vIDX}')
    if u >= NU - 2: redw(u - (NU - 2), 2)
    E(u, 10, 14)
    if u2 < NU: a(f'{MF} {vr(SB(u2),16)}, {vr(kb(u2>>2)+4,4)}, {vr(vQ+8*(u2&3)+4,4)}, {vr(SB(u2),16)}')
    if j == 1 and kt + 1 < NKT:
        n = (4 if kt + 2 < NKT else 0) + (2 if kt + 3 < NKT else 0)
        a(f's_waitcnt vmcnt({n})')
    if u >= NU - 2: redw(u - (NU - 2), 3)
    E(u, 14, 16)
redw(2, 0); redw(2, 1)
a(f'{SM} {vr(vO+48,16)}, {vr(kb(NKT-1)+12,4)}, {vr(SB(NU-1)+8,8)}, v{vIDX}')
redw(2, 2); redw(2, 3)
sOo, sFo, sOl = 70, 71, 72
a(f'''
s_lshl_b32 s{sT}, s{sQB}, 2
s_add_u32 s{sT}, s{sT}, s{sWQ}
s_lshl_b32 s{sOo}, s{sT}, 4
s_add_u32 s{sOo}, s{sOo}, s{sH}
s_lshl_b32 s{sOo}, s{sOo}, 11
s_add_u32 s{sOo}, s{sOo}, {OF}
s_lshl_b32 s{sT}, s{sT}, 8
s_lshr_b32 s{sT+1}, s{sH}, 3
s_lshl_b32 s{sT+1}, s{sT+1}, 7
s_add_u32 s{sT}, s{sT}, s{sT+1}
s_and_b32 s{sT+1}, s{sH}, 7
s_lshl_b32 s{sT+1}, s{sT+1}, 2
s_add_u32 s{sT}, s{sT}, s{sT+1}
s_add_u32 s{sFo}, s{sT}, {FOA}
s_waitcnt lgkmcnt(0)
''')
stamp(5)
a('s_barrier')
for j in range(3):
    for q in range(4): a(f'ds_read_b128 {vr(vS+16*j+4*q,4)}, v{vRR} offset:{j*16384+q*1024}')
vA = vO + 48
for j in range(3):
    for q in range(4):
        a(f's_waitcnt lgkmcnt({11-4*j-q})')
        for e in (0, 2): a(f'v_pk_add_f32 {vr(vA+4*q+e,2)}, {vr(vA+4*q+e,2)}, {vr(vS+16*j+4*q+e,2)}')
a.label('L_norm')
a(f'''
v_mov_b32 v8, v{vA+12}
v_mov_b32 v9, v{vA+12}
s_mov_b32 exec_lo, 0
v_mov_b64 v[{vA+12}:{vA+13}], 0
v_mov_b64 v[{vA+14}:{vA+15}], 0
s_mov_b32 exec_lo, -1
v_permlane32_swap_b32 v8, v9
v_rcp_f32 v10, v9
v_maximum3_f32 v8, |v{vA}|, |v{vA+1}|, v9
''')
for i in range(2, 16, 2): a(f'v_maximum3_f32 v8, |v{vA+i}|, |v{vA+i+1}|, v8')
for i in range(0, 16, 2): a(f'v_pk_mul_f32 {vr(vA+i,2)}, {vr(vA+i,2)}, v[10:11] op_sel_hi:[1,0]')
a(f'''
s_mov_b32 s{sT}, {hex(f2u(2.0**120))}
s_mov_b32 s{sT+1}, {hex(f2u(2.0**-64))}
v_cmp_nlt_f32 vcc, v8, s{sT}
v_cmp_ngt_f32 s[76:77], v9, s{sT+1}
''')
for i in range(8): a(f'v_cvt_pk_bf16_f32 v{vS+i}, v{vA+2*i}, v{vA+2*i+1}')
a('s_or_b64 vcc, vcc, s[76:77]')
if OPT['force_fb']: a('s_mov_b64 vcc, 1')
a('s_cbranch_vccnz L_fallback')
a.label('L_ostore')
for c in range(2): a(f'buffer_store_dwordx4 {vr(vS+4*c,4)}, v1, {WSR}, s{sOo} offen offset:{1024*c} sc1')
a(f'''
v_add_u32 v4, 6144, v{vWO}
v_add_u32 v5, 12288, v{vWO}
v_add_u32 v6, 18432, v{vWO}
s_mul_i32 s{sT}, s{sWQ}, {32*896}
s_lshl_b32 s{sT+1}, s{sU}, 7
s_add_u32 s{sT}, s{sT}, s{sT+1}
s_add_u32 s{sT}, s{sT}, {320*896}
s_lshl_b32 s{sT+1}, s{sWQ}, 12
s_add_u32 m0, s{sT+1}, {L_RED}
s_nop 0
buffer_load_dwordx4 v{vWO}, s[{SWOA}:{SWOA+3}], s{sT} offen lds
buffer_load_dwordx4 v4, s[{SWOA}:{SWOA+3}], s{sT} offen offset:1024 lds
buffer_load_dwordx4 v5, s[{SWOA}:{SWOA+3}], s{sT} offen offset:2048 lds
buffer_load_dwordx4 v6, s[{SWOA}:{SWOA+3}], s{sT} offen offset:3072 lds
''')
vPA, vPX, vPO, vPF = 4, 8, 10, 11
vOF, vAC, vWF = 112, 176, 208
def p3_setup(br, img, exch):
    a(f'''
    s_and_b32 s78, s{sWQ}, 1
    s_lshr_b32 s79, s{sWQ}, 1
    v_bfe_u32 v12, v0, 2, 2
    v_and_b32 v13, 3, v0
    v_lshlrev_b32 v13, 3, v13
    v_bfe_u32 v14, v0, 4, 1
    v_lshl_or_b32 v13, v14, 5, v13
    v_lshrrev_b32 v14, 1, v12
    v_xor_b32 v14, s79, v14
    v_lshl_or_b32 v13, v14, 6, v13
    v_lshl_or_b32 v13, v12, 7, v13
    s_mul_i32 s80, s79, {224*128}
    s_add_u32 s80, s80, {img}
    v_add_u32 v{vPA+2}, s80, v13
    v_xor_b32 v13, 64, v13
    v_add_u32 v{vPA+3}, s80, v13
    v_lshrrev_b32 v14, 5, v0
    v_lshlrev_b32 v12, 9, v14
    v_add_u32 v{vPA}, v{vPA+2}, v12
    v_add_u32 v{vPA+1}, v{vPA+3}, v12
    s_lshl_b32 s80, s{sWQ}, 12
    s_add_u32 s80, s80, {exch}
    v_add_u32 v{vPX}, s80, v1
    s_xor_b32 s80, s{sWQ}, 2
    s_lshl_b32 s80, s80, 12
    s_add_u32 s80, s80, {exch}
    v_add_u32 v{vPX+1}, s80, v1
    v_and_b32 v12, 31, v0
    ''')
    if br == 0:
        a('''
        v_and_b32 v13, 19, v12
        v_bfe_u32 v11, v12, 2, 1
        v_lshl_or_b32 v13, v11, 3, v13
        v_bfe_u32 v11, v12, 3, 1
        v_lshl_or_b32 v12, v11, 2, v13
        ''')
    a(f'''
    v_mul_u32_u24 v12, 1792, v12
    v_lshl_add_u32 v{vPO}, v14, 4, v12
    s_lshl_b32 s80, s{sTB64}, 1
    s_add_u32 s80, s80, s78
    s_mul_i32 s81, s80, {32*1792}
    s_lshl_b32 s82, s{sU}, 7
    s_add_u32 s81, s81, s82
    s_lshl_b32 s82, s79, 6
    s_add_u32 s81, s81, s82
    s_add_u32 s81, s81, {br*896}
    s_lshl_b32 s82, s80, 15
    s_lshl_b32 s83, s79, 14
    s_add_u32 s82, s82, s83
    s_add_u32 s82, s82, {OF + br*0x200000}
    ''')
    if br == 0: a(f's_lshl_b32 s83, s80, 8\ns_lshl_b32 s84, s79, 7\ns_add_u32 s83, s83, s84\ns_add_u32 s83, s83, {FOA}')
    else: a(f's_lshl_b32 s83, s{sTB64}, 8\ns_lshl_b32 s84, s79, 7\ns_add_u32 s83, s83, s84\ns_add_u32 s83, s83, {FOB}')
    a(f'v_lshlrev_b32 v{vPF}, 2, v0\nv_add_u32 v{vPF}, s83, v{vPF}')
def p3_loads():
    for n in range(16):
        a(f'buffer_load_dwordx4 {vr(vOF+4*n,4)}, v1, {WSR}, s82 offen offset:{1024*(n%4)} sc1')
        if n % 4 == 3 and n < 15: a('s_add_u32 s82, s82, 4096')
p3_setup(0, L_WOA, L_TX)
a('s_waitcnt vmcnt(4)')
setflag(sFo, 12, 13)
stamp(6)
a(f's_cmp_ge_u32 s{sI}, 28\ns_cbranch_scc1 L_fin')
if OPT['stop'] == 2: a('s_branch L_fin')
poll(vPF, SWS, 0xff, 12, sleep=0)
stamp(7)
p3_loads()
a('s_barrier')
a.label('L_p3')
def wo_reads(n):
    hl, c = n >> 1, n & 1
    for aa in range(2):
        for jj in range(2):
            ad = vPA + aa + (2 if (c == 1 and jj == 1) else 0)
            a(f'ds_read_b64_tr_b16 {vr(vWF+16*(n&1)+4*aa+2*jj,2)}, v{ad} offset:{(28*hl+16*c+8*jj)*128}')
wo_reads(0)
for n in range(16):
    if n < 15: wo_reads(n + 1)
    a(f's_waitcnt vmcnt({15-n}) lgkmcnt({4 if n < 15 else 0})')
    for aa in (1, 0):
        a(f'{MF} {vr(vAC+16*aa,16)}, {vr(vWF+16*(n&1)+4*aa,4)}, {vr(vOF+4*n,4)}, {vr(vAC+16*aa,16) if n else 0}')
a('s_nop 10')
for q in range(4): a(f'ds_write_b128 v{vPX}, {vr(vAC+16+4*q,4)} offset:{1024*q}')
a('s_waitcnt lgkmcnt(0)\ns_barrier')
for q in range(4): a(f'ds_read_b128 {vr(vAC+16+4*q,4)}, v{vPX+1} offset:{1024*q}')
for q in range(4):
    a(f's_waitcnt lgkmcnt({3-q})')
    for e in (0, 2): a(f'v_pk_add_f32 {vr(vAC+4*q+e,2)}, {vr(vAC+4*q+e,2)}, {vr(vAC+16+4*q+e,2)}')
for i in range(8): a(f'v_cvt_pk_bf16_f32 v{vWF+i}, v{vAC+2*i}, v{vAC+2*i+1}')
a(f'''
v_permlane32_swap_b32 v{vWF}, v{vWF+2}
v_permlane32_swap_b32 v{vWF+1}, v{vWF+3}
v_permlane32_swap_b32 v{vWF+4}, v{vWF+6}
v_permlane32_swap_b32 v{vWF+5}, v{vWF+7}
buffer_store_dwordx4 {vr(vWF,4)}, v{vPO}, s[{SOUT}:{SOUT+3}], s81 offen
buffer_store_dwordx4 {vr(vWF+4,4)}, v{vPO}, s[{SOUT}:{SOUT+3}], s81 offen offset:32
''')
a.label('L_fin')
if OPT['stamp']:
    stamp(8)
    a('s_waitcnt vmcnt(0)')
    stamp(9)
    stamp_out()
a.label('L_end')
a('s_endpgm')

a.label('L_fallback')
Q3 = vQ + 24
a(f'''
s_mov_b32 exec_lo, 0
v_mov_b32 v{Q3+6}, 0
s_mov_b32 exec_lo, -1
s_lshl_b32 s76, s{sH}, 18
s_add_u32 s76, s76, {KVF}
s_mov_b32 s77, s76
s_add_u32 s78, s76, {64*4096}
v_mov_b32 v12, 0xff800000
''')
a.label('L_fb1')
a(f'''
buffer_load_dwordx4 {vr(vKV,4)}, v1, {WSR}, s77 offen sc1
buffer_load_dwordx4 {vr(vKV+4,4)}, v1, {WSR}, s77 offen offset:1024 sc1
s_waitcnt vmcnt(0)
{MF} {vr(vS,16)}, {vr(vKV,4)}, {vr(Q3,4)}, 0
{MF} {vr(vS,16)}, {vr(vKV+4,4)}, {vr(Q3+4,4)}, {vr(vS,16)}
s_nop 11
''')
for i in range(0, 16, 2): a(f'v_max3_f32 v12, v12, v{vS+i}, v{vS+i+1}')
a(f'''
s_add_u32 s77, s77, 4096
s_cmp_lt_u32 s77, s78
s_cbranch_scc1 L_fb1
v_mov_b32 v13, v12
s_nop 1
v_permlane32_swap_b32 v12, v13
v_max_f32 v12, v12, v13
''')
for i in range(0, 16, 2): a(f'v_mov_b64 v[{vA+i}:{vA+i+1}], 0')
a.label('L_fb2')
for c in range(4): a(f'buffer_load_dwordx4 {vr(vKV+4*c,4)}, v1, {WSR}, s76 offen offset:{1024*c} sc1')
a(f'''
s_waitcnt vmcnt(0)
{MF} {vr(vS,16)}, {vr(vKV,4)}, {vr(Q3,4)}, 0
{MF} {vr(vS,16)}, {vr(vKV+4,4)}, {vr(Q3+4,4)}, {vr(vS,16)}
s_nop 11
''')
for i in range(16): a(f'v_sub_f32 v{vS+i}, v{vS+i}, v12')
for i in range(16): a(f'v_exp_f32 v{vS+i}, v{vS+i}')
a(f'''
s_nop 1
{SM} {vr(vA,16)}, {vr(vKV+8,4)}, {vr(vS,8)}, v{vIDX}
{SM} {vr(vA,16)}, {vr(vKV+12,4)}, {vr(vS+8,8)}, v{vIDX}
s_add_u32 s76, s76, 4096
s_cmp_lt_u32 s76, s78
s_cbranch_scc1 L_fb2
s_nop 11
v_mov_b32 v8, v{vA+12}
v_mov_b32 v9, v{vA+12}
s_mov_b32 exec_lo, 0
v_mov_b64 v[{vA+12}:{vA+13}], 0
v_mov_b64 v[{vA+14}:{vA+15}], 0
s_mov_b32 exec_lo, -1
v_permlane32_swap_b32 v8, v9
v_rcp_f32 v10, v9
s_nop 0
''')
for i in range(0, 16, 2): a(f'v_pk_mul_f32 {vr(vA+i,2)}, {vr(vA+i,2)}, v[10:11] op_sel_hi:[1,0]')
for i in range(8): a(f'v_cvt_pk_bf16_f32 v{vS+i}, v{vA+2*i}, v{vA+2*i+1}')
a('s_branch L_ostore')

a.label('L_G')
vXR, vXR2, vWR, vWR2 = 4, 8, 12, 13
vACC, vFR, vPR, vPH = 16, 112, 152, 168
sTH, sSG, sHB = 70, 71, 72
a(f'''
s_lshr_b32 s{sTH}, s{sWQ}, 1
s_and_b32 s{sSG}, s{sWQ}, 1
s_getpc_b64 s[76:77]
L_pc:
s_sub_u32 s76, s76, L_pc-{NAME}_kernel
s_subb_u32 s77, s77, 0
s_lshl_b32 s{sT}, s{sI}, 2
s_add_u32 s{sT}, s{sT}, s{sWQ}
s_mulk_i32 s{sT}, 384
v_lshlrev_b32 v2, 7, v0
v_add_u32 v2, s{sT}, v2
v_min_u32 v2, L_code_end-{NAME}_kernel-4, v2
s_mov_b64 exec, 7
global_load_dword v255, v2, s[76:77]
s_mov_b64 exec, -1
v_and_b32 v14, 31, v0
v_lshrrev_b32 v15, 5, v0
v_bfe_u32 v2, v14, 1, 3
v_xor_b32 v2, v2, v15
v_lshlrev_b32 v2, 4, v2
v_lshl_or_b32 v2, v14, 7, v2
s_lshl_b32 s{sT}, s{sTH}, 13
v_add_u32 v{vXR}, s{sT}, v2
v_xor_b32 v{vXR+1}, 32, v{vXR}
v_xor_b32 v{vXR+2}, 64, v{vXR}
v_xor_b32 v{vXR+3}, 96, v{vXR}
v_add_u32 v{vXR2}, {2*STG}, v{vXR}
v_add_u32 v{vXR2+1}, {2*STG}, v{vXR+1}
v_add_u32 v{vXR2+2}, {2*STG}, v{vXR+2}
v_add_u32 v{vXR2+3}, {2*STG}, v{vXR+3}
v_bfe_u32 v2, v0, 2, 2
v_and_b32 v{vWR}, 3, v0
v_lshlrev_b32 v{vWR}, 3, v{vWR}
v_bfe_u32 v{vWR2}, v0, 4, 1
v_lshl_or_b32 v{vWR}, v{vWR2}, 5, v{vWR}
s_mul_i32 s{sT}, s{sSG}, 56
v_add_u32 v{vWR}, s{sT}, v{vWR}
v_lshrrev_b32 v{vWR2}, 1, v2
v_lshlrev_b32 v{vWR2}, 6, v{vWR2}
v_xor_b32 v{vWR}, v{vWR}, v{vWR2}
v_lshl_add_u32 v2, v15, 3, v2
v_lshl_add_u32 v{vWR}, v2, 7, v{vWR}
v_add_u32 v{vWR}, 16384, v{vWR}
v_add_u32 v{vWR2}, {2*STG}, v{vWR}
s_waitcnt lgkmcnt(0)
''')
srd(SWS, 22, WS_SIZE); srd(SDBG, 20, 256)
a(f'''
s_cmp_ge_u32 s2, 16
s_cbranch_scc1 L_noclear
s_lshl_b32 s{sT}, s2, 2
s_add_u32 s{sT}, s{sT}, s{sWQ}
s_mul_i32 s{sT+1}, s{sT}, 3072
s_lshl_b32 s{sT}, s{sT}, 2
v_mov_b64 v[16:17], 0
v_mov_b64 v[18:19], 0
buffer_store_dwordx4 v[16:19], v1, {WSR}, s{sT+1} offen sc1
buffer_store_dwordx4 v[16:19], v1, {WSR}, s{sT+1} offen offset:1024 sc1
buffer_store_dwordx4 v[16:19], v1, {WSR}, s{sT+1} offen offset:2048 sc1
v_mov_b32 v2, 1
s_waitcnt vmcnt(0)
s_mov_b64 exec, 1
buffer_store_dword v2, v16, s[{SDBG}:{SDBG+3}], s{sT} offen sc1
s_mov_b64 exec, -1
L_noclear:
''')
srd(SOUT, 18, 3670016); srd(SWOA, 8, 401408); srd(SWOB, 16, 401408); srd(SPHI, 14, 25088)
a(f'''
s_mul_i32 s{sT}, s{sI}, 37
s_lshr_b32 s{sT}, s{sT}, 8
s_mul_i32 s{sT+1}, s{sT}, 7
s_sub_u32 s{sU}, s{sI}, s{sT+1}
s_lshl_b32 s{sTB64}, s{sXC}, 2
s_add_u32 s{sTB64}, s{sTB64}, s{sT}
s_lshl_b32 s{sHB}, s{sGRP}, 1
s_add_u32 s{sHB}, s{sHB}, s{sSG}
s_cmp_eq_u32 s{sROLE}, 1
s_cbranch_scc1 L_GB
s_cmp_ge_u32 s{sGRP}, 6
s_cbranch_scc1 L_G_NNN
s_cmp_eq_u32 s{sGRP}, 5
s_cbranch_scc1 L_G_TNN
''')
acc = lambda tt, j: vACC + 16 * (2 * j + tt)
xf = lambda b, tt: vFR + 20 * b + 4 * tt
wf = lambda b, j: vFR + 20 * b + 8 + 4 * j
def gemm(pat, bar7):
    def rd_x(n, tt):
        s, ks = n >> 2, n & 3
        b = stg_base(s); hi = b >= 2 * STG
        a(f'ds_read_b128 {vr(xf(n&1,tt),4)}, v{(vXR2 if hi else vXR)+ks} offset:{b % (2*STG) + tt*4096}')
    def rd_w(n, j):
        s, ks = n >> 2, n & 3
        b = stg_base(s); hi = b >= 2 * STG
        for jj in range(2):
            a(f'ds_read_b64_tr_b16 {vr(wf(n&1,j)+2*jj,2)}, v{vWR2 if hi else vWR} offset:{b % (2*STG) + j*8192 + ks*2048 + jj*512}')
    def mf(n, j, tt):
        A, B = (wf(n&1,j), xf(n&1,tt)) if pat[j] == 'T' else (xf(n&1,tt), wf(n&1,j))
        a(f'{MF} {vr(acc(tt,j),16)}, {vr(A,4)}, {vr(B,4)}, {vr(acc(tt,j),16) if n else 0}')
    a('s_barrier')
    stamp(1)
    rd_x(0, 0); rd_x(0, 1); rd_w(0, 0); rd_w(0, 1); rd_w(0, 2)
    for n in range(28):
        last = n == 27
        bnd = (n & 3) == 3
        if not bnd:
            a('s_waitcnt lgkmcnt(4)')
            mf(n, 0, 0); rd_x(n+1, 0); rd_x(n+1, 1)
            mf(n, 0, 1); rd_w(n+1, 0)
            a('s_waitcnt lgkmcnt(6)')
            mf(n, 1, 0); rd_w(n+1, 1)
            mf(n, 1, 1); rd_w(n+1, 2)
            a('s_waitcnt lgkmcnt(8)')
            mf(n, 2, 0); mf(n, 2, 1)
        else:
            a('s_waitcnt lgkmcnt(4)')
            mf(n, 0, 0); mf(n, 0, 1)
            a('s_waitcnt lgkmcnt(0)')
            mf(n, 1, 0)
            if not last or bar7: a('s_barrier')
            if not last: rd_x(n+1, 0); rd_x(n+1, 1); rd_w(n+1, 0)
            mf(n, 1, 1)
            if not last: rd_w(n+1, 1)
            mf(n, 2, 0)
            if not last: rd_w(n+1, 2)
            mf(n, 2, 1)
    stamp(2)
vPI = 14
def epiA_setup():
    a(f'''
    v_and_b32 v2, 51, v0
    v_bfe_u32 v3, v0, 2, 1
    v_lshl_or_b32 v2, v3, 3, v2
    v_bfe_u32 v3, v0, 3, 1
    v_lshl_or_b32 v2, v3, 2, v2
    v_lshlrev_b32 v{vPI}, 4, v2
    s_mul_i32 s73, s{sGRP}, 6
    s_add_u32 s73, s73, s{sSG}
    s_lshl_b32 s74, s{sTB}, 2
    s_lshl_b32 s75, s{sTH}, 1
    s_add_u32 s74, s74, s75
    ''')
def epiA(j, typ):
    a(f'''
    s_add_u32 s76, s73, {2*j}
    s_and_b32 s77, s76, 15
    s_lshl_b32 s77, s77, 6
    s_add_u32 s77, s77, s74
    ''')
    P = vFR + 16 * (j & 1)
    if typ == 'T':
        a(f'''
        s_cmp_lt_u32 s76, 16
        s_cselect_b32 s78, 11, 12
        s_cselect_b32 s79, {QF >> 20}, {KVF >> 20}
        s_cselect_b32 s80, {hex(QSCALE)}, 1.0
        s_cselect_b32 s82, 0, 0x3f803f80
        s_lshl_b32 s77, s77, s78
        s_lshl_b32 s79, s79, 20
        s_add_u32 s77, s77, s79
        s_lshl_b32 s78, 1, s78
        s_add_u32 s78, s78, s77
        ''')
        for tt in range(2):
            A = acc(tt, j); p = P + 8 * tt
            for i in range(0, 16, 2): a(f'v_pk_mul_f32 {vr(A+i,2)}, {vr(A+i,2)}, s[80:81] op_sel_hi:[1,0]')
            for i in range(8): a(f'v_cvt_pk_bf16_f32 v{p+i}, v{A+2*i}, v{A+2*i+1}')
            a(f's_mov_b32 exec_lo, 0\nv_mov_b32 v{p+6}, s82\nv_mov_b32 v{p+7}, 0\ns_mov_b32 exec_lo, -1')
            for c in range(2): a(f'buffer_store_dwordx4 {vr(p+4*c,4)}, v{vPI}, {WSR}, s{77+tt} offen offset:{1024*c} sc1')
    else:
        a(f'''
        s_lshl_b32 s77, s77, 12
        s_add_u32 s77, s77, {KVF}
        s_add_u32 s78, s77, 4096
        s_mov_b32 s80, 0x3f803f80
        s_mov_b32 s81, 0x3f803f80
        ''')
        for tt in range(2):
            A = acc(tt, j); p = P + 8 * tt
            for i in range(8): a(f'v_cvt_pk_bf16_f32 v{p+i}, v{A+2*i}, v{A+2*i+1}')
            a('s_mov_b32 exec_lo, 0x10000000\ns_mov_b32 exec_hi, 0x10000000')
            for i in range(0, 8, 2): a(f'v_mov_b64 v[{p+i}:{p+i+1}], s[80:81]')
            a('s_mov_b64 exec, -1')
            for c in range(2): a(f'buffer_store_dwordx4 {vr(p+4*c,4)}, v1, {WSR}, s{77+tt} offen offset:{2048+1024*c} sc1')
for pat in ('TTT', 'TNN', 'NNN'):
    a.label('L_G_' + pat)
    epiA_setup()
    gemm(pat, False)
    a('s_nop 3')
    for j in range(3): epiA(j, pat[j])
    if pat != 'NNN': a('s_branch L_GA_done')
a.label('L_GA_done')
a(f'''
s_lshl_b32 s76, s{sGRP}, 4
s_add_u32 s76, s76, s{sTB}
s_lshl_b32 s76, s76, 7
s_waitcnt vmcnt(0)
s_barrier
s_cmp_lg_u32 s{sW}, 0
s_cbranch_scc1 L_GA_nf
''')
setflag(76, 2, 3)
a.label('L_GA_nf')
stamp(3)
a('s_branch L_G_common')

a.label('L_GB')
a(f'''
v_and_b32 v14, 31, v0
v_lshrrev_b32 v15, 5, v0
v_mul_u32_u24 v2, 224, v15
v_lshl_add_u32 v2, v14, 1, v2
v_mov_b32 v3, 0x10000000
v_cmp_gt_u32 vcc, 28, v14
s_mul_i32 s76, s{sHB}, 1568
s_nop 0
v_cndmask_b32 v2, v3, v2, vcc
s_mov_b32 exec_hi, 0
v_mov_b32 v3, v2
s_mov_b32 exec_hi, -1
''')
for c in range(2):
    for jj in range(2):
        for e in range(4):
            a(f'buffer_load_ushort v{vPR+8*c+4*jj+e}, v{3 if (c and jj) else 2}, s[{SPHI}:{SPHI+3}], s76 offen offset:{(16*c+8*jj+e)*56}')
gemm('TTN', True)
a('s_waitcnt vmcnt(0)')
for i in range(8): a(f'v_lshl_or_b32 v{vPH+i}, v{vPR+2*i+1}, 16, v{vPR+2*i}')
vY, vEP, vEN, vPK = 112, 128, 144, 160
vFQ = 176
vKA = 208
a(f's_mov_b32 s76, {hex(f2u(LOG2E))}\ns_mov_b32 s77, {hex(f2u(LOG2E))}')
def features(X, out):
    for i in range(8): a(f'v_cvt_pk_bf16_f32 v{vPK+i}, v{X+2*i}, v{X+2*i+1}')
    a(f's_mov_b32 exec_lo, 0\nv_mov_b64 v[{vPK+6}:{vPK+7}], 0\ns_mov_b32 exec_lo, -1')
    a(f'{MF} {vr(vY,16)}, {vr(vPH,4)}, {vr(vPK,4)}, 0')
    a(f'{MF} {vr(vY,16)}, {vr(vPH+4,4)}, {vr(vPK+4,4)}, {vr(vY,16)}')
    a('s_nop 11')
    a(f'v_max3_f32 v4, v{vY}, v{vY+1}, v{vY+2}\nv_min3_f32 v6, v{vY}, v{vY+1}, v{vY+2}')
    for i in range(3, 11, 2): a(f'v_max3_f32 v4, v4, v{vY+i}, v{vY+i+1}\nv_min3_f32 v6, v6, v{vY+i}, v{vY+i+1}')
    a(f'v_max_f32 v4, v4, v{vY+11}\nv_min_f32 v6, v6, v{vY+11}')
    a('s_mov_b32 exec_hi, 0')
    for i in (12, 14): a(f'v_max3_f32 v4, v4, v{vY+i}, v{vY+i+1}\nv_min3_f32 v6, v6, v{vY+i}, v{vY+i+1}')
    a(f'''
    s_mov_b32 exec_hi, -1
    v_mov_b32 v5, v4
    v_mov_b32 v7, v6
    s_nop 0
    v_permlane32_swap_b32 v4, v5
    v_permlane32_swap_b32 v6, v7
    v_max_f32 v4, v4, v5
    v_min_f32 v6, v6, v7
    v_mul_f32 v4, s76, v4
    v_mul_f32 v6, s76, v6
    ''')
    for i in range(0, 16, 2):
        a(f'v_pk_fma_f32 {vr(vEP+i,2)}, {vr(vY+i,2)}, s[76:77], v[4:5] op_sel_hi:[1,1,0] neg_lo:[0,0,1] neg_hi:[0,0,1]')
        a(f'v_pk_fma_f32 {vr(vEN+i,2)}, {vr(vY+i,2)}, s[76:77], v[6:7] op_sel_hi:[1,1,0] neg_lo:[1,0,0] neg_hi:[1,0,0]')
    for i in range(16): a(f'v_exp_f32 v{vEP+i}, v{vEP+i}')
    for i in range(16): a(f'v_exp_f32 v{vEN+i}, v{vEN+i}')
    a('s_mov_b32 exec_lo, 0')
    for b in (vEP, vEN): a(f'v_mov_b64 v[{b+12}:{b+13}], 0\nv_mov_b64 v[{b+14}:{b+15}], 0')
    a('s_mov_b32 exec_lo, -1')
    a(f'v_pk_add_f32 v[4:5], {vr(vEP,2)}, {vr(vEP+2,2)}\nv_pk_add_f32 v[6:7], {vr(vEN,2)}, {vr(vEN+2,2)}')
    for i in range(4, 16, 2): a(f'v_pk_add_f32 v[4:5], v[4:5], {vr(vEP+i,2)}\nv_pk_add_f32 v[6:7], v[6:7], {vr(vEN+i,2)}')
    a(f'''
    v_add_f32 v4, v4, v5
    v_add_f32 v6, v6, v7
    v_mov_b32 v5, v4
    v_mov_b32 v7, v6
    s_nop 0
    v_permlane32_swap_b32 v4, v5
    v_permlane32_swap_b32 v6, v7
    v_add_f32 v4, v4, v5
    v_add_f32 v6, v6, v7
    v_rcp_f32 v4, v4
    v_rcp_f32 v6, v6
    ''')
    for i in range(0, 16, 2): a(f'v_pk_mul_f32 {vr(vEP+i,2)}, {vr(vEP+i,2)}, v[4:5] op_sel_hi:[1,0]')
    for i in range(0, 16, 2): a(f'v_pk_mul_f32 {vr(vEN+i,2)}, {vr(vEN+i,2)}, v[6:7] op_sel_hi:[1,0]')
    for i in range(8): a(f'v_cvt_pk_bf16_f32 v{out+i}, v{vEP+2*i}, v{vEP+2*i+1}')
    for i in range(8): a(f'v_cvt_pk_bf16_f32 v{out+8+i}, v{vEN+2*i}, v{vEN+2*i+1}')
a(f'''
s_lshl_b32 s78, s{sWQ}, 12
s_add_u32 s78, s78, {L_GX}
v_and_b32 v14, 31, v0
v_lshrrev_b32 v15, 5, v0
v_bfe_u32 v2, v14, 1, 3
v_xor_b32 v2, v2, v15
v_lshlrev_b32 v2, 3, v2
v_lshl_or_b32 v2, v14, 6, v2
v_add_u32 v8, s78, v2
v_xor_b32 v9, 16, v8
v_xor_b32 v10, 32, v8
v_xor_b32 v11, 48, v8
v_bfe_u32 v2, v0, 2, 2
v_lshl_add_u32 v2, v15, 2, v2
v_and_b32 v3, 3, v0
v_bfe_u32 v14, v0, 4, 1
v_lshl_or_b32 v3, v14, 2, v3
v_lshrrev_b32 v14, 1, v2
v_xor_b32 v3, v3, v14
v_lshlrev_b32 v3, 3, v3
v_lshl_or_b32 v3, v2, 6, v3
v_add_u32 v12, s78, v3
v_xor_b32 v13, 32, v12
s_mov_b32 s80, 0x3f803f80
s_mov_b32 s81, 0x3f803f80
''')
for tt in range(2):
    K = acc(tt, 1); V = acc(tt, 2)
    features(K, K)
    for s in range(2):
        for g4 in range(4): a(f'ds_write_b64 v{8+g4}, {vr(K+8*s+2*g4,2)} offset:{2048*s}')
    for i in range(8): a(f'v_cvt_pk_bf16_f32 v{V+i}, v{V+2*i}, v{V+2*i+1}')
    a('s_mov_b32 exec_lo, 0x10000000\ns_mov_b32 exec_hi, 0x10000000')
    for i in range(0, 8, 2): a(f'v_mov_b64 v[{V+i}:{V+i+1}], s[80:81]')
    a('s_mov_b64 exec, -1\ns_waitcnt lgkmcnt(0)')
    for s in range(2):
        for m in range(2):
            for jj in range(2): a(f'ds_read_b64_tr_b16 {vr(K+8*s+4*m+2*jj,2)}, v{12+jj} offset:{2048*s+1024*m+512*jj}')
    for s in range(2):
        for m in range(2):
            a(f's_waitcnt lgkmcnt({6-4*s-2*m})')
            a(f'{MF} {vr(vKA+16*s,16)}, {vr(K+8*s+4*m,4)}, {vr(V+4*m,4)}, {vr(vKA+16*s,16) if (tt or m) else 0}')
a(f'''
s_lshl_b32 s78, s{sHB}, 13
s_add_u32 s78, s78, {KVACC}
s_add_u32 s79, s78, 4096
v_lshlrev_b32 v14, 2, v0
s_nop 5
''')
for s in range(2):
    for r in range(16): a(f'buffer_atomic_add_f32 v{vKA+16*s+r}, v14, {WSR}, s{78+s} offen offset:{256*r}')
stamp(3)
for tt in range(2): features(acc(tt, 0), vFQ + 16 * tt)
stamp(4)
a(f'''
s_lshl_b32 s82, s{sHB}, 7
s_add_u32 s82, s82, {FKV}
v_add_u32 v15, s82, v14
s_lshl_b32 s83, s{sTB}, 1
s_add_u32 s83, s83, s{sTH}
s_lshl_b32 s84, s83, 2
s_add_u32 s82, s82, s84
s_waitcnt vmcnt(0)
''')
setflag(82, 2, 3)
stamp(5)
poll(15, SWS, 'lo', 2, sleep=4)
for s in range(2):
    for r in range(16): a(f'buffer_load_dword v{vKA+16*s+r}, v14, {WSR}, s{78+s} offen offset:{256*r} sc1')
a(f'''
s_lshl_b32 s78, s83, 5
s_add_u32 s78, s78, s{sHB}
s_lshl_b32 s78, s78, 11
s_add_u32 s78, s78, {OF + 0x200000}
s_add_u32 s79, s78, 32768
s_lshl_b32 s82, s83, 8
s_lshr_b32 s84, s{sHB}, 3
s_lshl_b32 s84, s84, 7
s_add_u32 s82, s82, s84
s_and_b32 s84, s{sHB}, 7
s_lshl_b32 s84, s84, 2
s_add_u32 s82, s82, s84
s_add_u32 s82, s82, {FOB}
s_waitcnt vmcnt(0)
''')
for i in range(16): a(f'v_cvt_pk_bf16_f32 v{16+i}, v{vKA+2*i}, v{vKA+2*i+1}')
for tt in range(2):
    for q in range(4):
        a(f'{MF} {vr(vY+16*tt,16)}, {vr(16+4*q,4)}, {vr(vFQ+16*tt+4*q,4)}, {vr(vY+16*tt,16) if q else 0}')
a('s_nop 7')
for tt in range(2):
    N = vY + 16 * tt; p = 32 + 8 * tt
    a(f'''
    v_mov_b32 v4, v{N+12}
    v_mov_b32 v5, v{N+12}
    s_nop 1
    v_permlane32_swap_b32 v4, v5
    v_add_f32 v4, {hex(f2u(1e-6))}, v5
    v_rcp_f32 v4, v4
    s_nop 0
    ''')
    for i in range(0, 16, 2): a(f'v_pk_mul_f32 {vr(N+i,2)}, {vr(N+i,2)}, v[4:5] op_sel_hi:[1,0]')
    for i in range(8): a(f'v_cvt_pk_bf16_f32 v{p+i}, v{N+2*i}, v{N+2*i+1}')
    a(f's_mov_b32 exec_lo, 0\nv_mov_b64 v[{p+6}:{p+7}], 0\ns_mov_b32 exec_lo, -1')
    for c in range(2): a(f'buffer_store_dwordx4 {vr(p+4*c,4)}, v1, {WSR}, s{78+tt} offen offset:{1024*c} sc1')
a('s_waitcnt vmcnt(0)')
setflag(82, 2, 3)
stamp(6)
a.label('L_G_common')
a(f's_cmp_ge_u32 s{sI}, 28\ns_cbranch_scc1 L_fin')
if OPT['stop'] <= 2: a('s_branch L_fin')
a(f'''
v_lshrrev_b32 v10, 3, v0
v_and_b32 v11, 7, v0
v_bfe_u32 v12, v0, 4, 1
v_lshlrev_b32 v12, 2, v12
v_xor_b32 v11, v11, v12
v_lshlrev_b32 v11, 4, v11
v_mul_u32_u24 v10, 896, v10
v_add_u32 v4, v10, v11
v_add_u32 v5, 6144, v4
v_add_u32 v6, 12288, v4
v_add_u32 v7, 18432, v4
s_lshl_b32 s78, s{sU}, 7
''')
for (srdw, img, n) in ((SWOB, L_WOB, 14), (SWOA, L_WOA, 10)):
    a(f's_mul_i32 s76, s{sWQ}, {n*8*896}\ns_add_u32 s76, s76, s78\ns_mul_i32 s77, s{sWQ}, {n*1024}')
    for g in range(0, n, 4):
        a(f's_add_u32 m0, s77, {img + g*1024}\ns_nop 0')
        for i in range(min(4, n - g)):
            a(f'buffer_load_dwordx4 v{4+i}, s[{srdw}:{srdw+3}], s76 offen offset:{1024*i} lds')
        if g + 4 < n: a(f's_add_u32 s76, s76, {32*896}')
p3_setup(1, L_WOB, L_GX)
poll(vPF, SWS, 0xff, 12, sleep=8)
p3_loads()
a('s_waitcnt vmcnt(0)')
stamp(7)
a('s_barrier')
a('s_branch L_p3')
a.label('L_code_end')

bad = check_hazards(a.lines)
for b in bad: print('HAZARD', b, file=sys.stderr)

hdr = open('cdna_kernels/' + NAME + '.s.ref').read().split('; @launch')[0]
out = hdr + '; @launch grid=(256,1,1) block=(512,1,1) lds=163840\n'
out += f'''.amdgcn_target "amdgcn-amd-amdhsa--gfx950"
.text
.globl {NAME}_kernel
.p2align 8
.type {NAME}_kernel,@function
''' + a.text() + f'''.section .rodata,"a"
.p2align 6
.amdhsa_kernel {NAME}_kernel
  .amdhsa_next_free_vgpr 256
  .amdhsa_next_free_sgpr 102
  .amdhsa_accum_offset 256
  .amdhsa_group_segment_fixed_size 0
  .amdhsa_kernarg_size 80
  .amdhsa_user_sgpr_count 2
  .amdhsa_user_sgpr_kernarg_segment_ptr 1
  .amdhsa_system_sgpr_workgroup_id_x 1
.end_amdhsa_kernel
'''
open(sys.argv[1], 'w').write(out)
```

```python
import sys, math, struct
from asmlib import *

NAME = 'concat_heads__softmax_full_mha__linear_kernel_hedgehog__prompt'
OPT = dict(probe=-1, probeT=1, stamp=0, stop=99, wo_early=1, force_fb=0, noatom=0, rot=0, ntx=0, ntw=0, onepoll=1, depth=2, psleep=2, prio=1)
for a in sys.argv[2:]:
    k, v = a.split('='); OPT[k] = int(v)

MF = 'v_mfma_f32_32x32x16_bf16'
SM = 'v_smfmac_f32_32x32x32_bf16'
def f2u(x): return struct.unpack('<I', struct.pack('<f', x))[0]
LOG2E = math.log2(math.e)
QSCALE = f2u(28 ** -0.5 * LOG2E)
BIAS = 16.0

FA, FOA, FOB, FKV = 0x0, 0x4000, 0x8000, 0xA000
KVACC = 0x10000
STAMP = 0x80000
QF, KVF, OF = 0x100000, 0x400000, 0x800000
WS_SIZE = 0x1000000
L_WOB, L_GX, L_WOA, L_RED = 0, 57344, 73728, 114688
L_TX = L_RED + 16384
STG = 40960
def stg_base(s): return ((s + 2) % 4) * STG

SX, SW, SWS, SDBG, SOUT, SWOA, SWOB, SPHI = 24, 28, 32, 36, 40, 44, 48, 52
sW, sWQ, sXC, sI, sROLE, sTB, sGRP, sH, sQB, sU, sTB64 = range(56, 67)
sT = 67
sSPIN = 90
sST = 92

a = Asm()
def srd(base, lo, size):
    a(f's_mov_b32 s{base}, s{lo}\ns_mov_b32 s{base+1}, s{lo+1}\ns_mov_b32 s{base+2}, {size}\ns_mov_b32 s{base+3}, 0x20000')
nstamp = {'G': 0, 'T': 0}
def stamp(idx):
    if not OPT['stamp']: return
    a(f's_memrealtime s[88:89]\ns_waitcnt lgkmcnt(0)\nv_writelane_b32 v254, s88, {idx}')
def stamp_out():
    if not OPT['stamp']: return
    a(f's_lshl_b32 s88, s2, 3\ns_add_u32 s88, s88, s{sW}\ns_lshl_b32 s88, s88, 6\ns_add_u32 s88, s88, {STAMP}')
    a('s_mov_b64 exec, 0xffff\nv_lshlrev_b32 v3, 2, v0')
    a(f'buffer_store_dword v254, v3, s[{SWS}:{SWS+3}], s88 offen')
    a('s_mov_b64 exec, -1')

def poll(voff, srdb, mask, vtmp, sleep=1, expect=1):
    L = a.newlabel('L_poll'); D = a.newlabel('L_polld')
    if mask == 'lo': a('s_mov_b32 exec_hi, 0')
    else: a(f's_mov_b64 exec, {mask}')
    a(f's_mov_b32 s{sSPIN}, 0x40000')
    a.label(L)
    a(f'buffer_load_dword v{vtmp}, v{voff}, s[{srdb}:{srdb+3}], 0 offen sc1\ns_waitcnt vmcnt(0)')
    a(f'v_cmp_ne_u32 vcc, {expect}, v{vtmp}\ns_cbranch_vccz {D}')
    if sleep: a(f's_sleep {sleep}')
    a(f's_sub_u32 s{sSPIN}, s{sSPIN}, 1\ns_cbranch_scc0 {L}')
    a.label(D)
    a('s_mov_b64 exec, -1')
def setflag(soff, v1, v2):
    a(f's_mov_b64 exec, 1\nv_mov_b32 v{v1}, 1\nv_mov_b32 v{v2}, 0')
    a(f'buffer_store_dword v{v1}, v{v2}, s[{SWS}:{SWS+3}], s{soff} offen sc1\ns_mov_b64 exec, -1')

a.label(NAME + '_kernel')
if OPT['stamp']: a('s_memrealtime s[86:87]')
a(f'''
s_cmp_ge_u32 s2, 256
s_cbranch_scc1 L_end
s_load_dwordx16 s[4:19], s[0:1], 0
s_load_dwordx4 s[20:23], s[0:1], 64
v_lshrrev_b32 v1, 6, v0
v_and_b32 v0, 63, v0
v_readfirstlane_b32 s{sW}, v1
s_and_b32 s{sXC}, s2, 7
s_lshr_b32 s{sI}, s2, 3
s_and_b32 s{sROLE}, s{sI}, 1
s_lshr_b32 s{sQB}, s{sI}, 1
s_lshr_b32 s{sT}, s{sXC}, 1
s_lshl_b32 s{sT}, s{sT}, 2
s_and_b32 s{sTB}, s{sQB}, 3
s_add_u32 s{sTB}, s{sTB}, s{sT}
s_and_b32 s{sT}, s{sXC}, 1
s_lshl_b32 s{sT}, s{sT}, 2
s_lshr_b32 s{sGRP}, s{sQB}, 2
s_add_u32 s{sGRP}, s{sGRP}, s{sT}
s_and_b32 s{sWQ}, s{sW}, 3
v_lshlrev_b32 v1, 4, v0
''')
if OPT['stamp']:
    a('v_mov_b32 v254, 0\ns_waitcnt lgkmcnt(0)\nv_writelane_b32 v254, s86, 0')
    stamp(10)
a(f's_cmp_lt_u32 s{sW}, 4\ns_cbranch_scc1 L_G')

vX, vWl = 4, 8
sXo, sWo, sMX, sMW = 70, 71, 74, 75
a(f'''
v_lshrrev_b32 v10, 3, v0
v_and_b32 v11, 7, v0
v_lshrrev_b32 v12, 4, v0
v_xor_b32 v13, v11, v12
v_lshlrev_b32 v13, 4, v13
v_mul_u32_u24 v14, 896, v10
v_add_u32 v{vX}, v14, v13
v_xor_b32 v{vX+1}, 64, v{vX}
v_add_u32 v{vX+1}, 6144, v{vX+1}
v_add_u32 v{vX+2}, 12288, v{vX}
v_add_u32 v{vX+3}, 12288, v{vX+1}
v_and_b32 v12, 1, v12
v_lshlrev_b32 v12, 2, v12
v_xor_b32 v13, v11, v12
v_lshlrev_b32 v15, 4, v13
v_add_u32 v15, v14, v15
v_min_u32 v13, 6, v13
v_lshlrev_b32 v13, 4, v13
v_mul_u32_u24 v14, 2688, v10
v_add_u32 v{vWl}, v14, v13
v_add_u32 v{vWl+1}, 20480, v{vWl}
s_mul_i32 s{sXo}, s{sTB}, 114688
s_mul_i32 s{sT}, s{sWQ}, 28672
s_add_u32 s{sXo}, s{sXo}, s{sT}
s_cmp_eq_u32 s{sROLE}, 0
s_cselect_b32 s{sT}, 3, 1
s_cselect_b32 s{sT+1}, 1, 8
s_mulk_i32 s{sT}, 112
s_mulk_i32 s{sT+1}, 112
s_mul_i32 s{sWo}, s{sGRP}, s{sT}
s_mul_i32 s{sT}, s{sWQ}, {16*2688}
s_add_u32 s{sWo}, s{sWo}, s{sT}
s_add_u32 s{sWo+1}, s{sWo}, s{sT+1}
s_add_u32 s{sWo+2}, s{sWo+1}, s{sT+1}
s_lshl_b32 s{sMX}, s{sWQ}, 12
s_lshl_b32 s{sMW}, s{sWQ}, 11
s_cmp_eq_u32 s{sROLE}, 0
s_waitcnt lgkmcnt(0)
s_cselect_b64 s[{SX}:{SX+1}], s[4:5], s[10:11]
s_cselect_b64 s[{SW}:{SW+1}], s[6:7], s[12:13]
s_mov_b32 s{SX+2}, 1835008
s_mov_b32 s{SX+3}, 0x20000
s_mov_b32 s{SW+2}, 1204224
s_mov_b32 s{SW+3}, 0x20000
''')
vWO = 15
sRS = 76
def p1_issue(s):
    b = stg_base(s)
    fx = ' nt' if OPT['ntx'] else ''; fw = ' nt' if OPT['ntw'] else ''
    for j in range(3):
        a(f's_add_u32 m0, s{sMW}, {b + 16384 + j*8192}')
        a('s_nop 0')
        a(f'buffer_load_dwordx4 v{vWl}, s[{SW}:{SW+3}], s{sWo+j} offen{fw} lds')
        a(f'buffer_load_dwordx4 v{vWl+1}, s[{SW}:{SW+3}], s{sWo+j} offen offset:1024{fw} lds')
    a(f's_add_u32 m0, s{sMX}, {b}')
    a('s_nop 0')
    for i in range(4):
        a(f'buffer_load_dwordx4 v{vX+i}, s[{SX}:{SX+3}], s{sXo} offen offset:{1024*i}{fx} lds')
    if s < 6:
        if OPT['rot']:
            a(f's_add_u32 s{sRS}, s{sRS}, 1\ns_cmp_eq_u32 s{sRS}, 7\ns_cselect_b32 s77, -6, 1\ns_mul_i32 s78, s77, {64*2688}\ns_lshl_b32 s77, s77, 7')
            for j in range(3): a(f's_add_u32 s{sWo+j}, s{sWo+j}, s78')
            a(f's_add_u32 s{sXo}, s{sXo}, s77')
        else:
            for j in range(3): a(f's_add_u32 s{sWo+j}, s{sWo+j}, {64*2688}')
            a(f's_add_u32 s{sXo}, s{sXo}, 128')
if OPT['rot']:
    a(f's_mul_i32 s{sRS}, s{sXC}, 4\ns_lshr_b32 s77, {hex(0x53164210)}, s{sRS}\ns_and_b32 s{sRS}, s77, 15')
    a(f's_mul_i32 s78, s{sRS}, {64*2688}\ns_lshl_b32 s77, s{sRS}, 7')
    for j in range(3): a(f's_add_u32 s{sWo+j}, s{sWo+j}, s78')
    a(f's_add_u32 s{sXo}, s{sXo}, s77')
DEP = OPT['depth']
stamp(11)
for s in range(DEP): p1_issue(s)
stamp(12)
srd(SWS, 22, WS_SIZE); srd(SDBG, 20, 256); srd(SOUT, 18, 3670016); srd(SWOA, 8, 401408)
a(f'''
s_lshl_b32 s{sH}, s{sXC}, 1
s_add_u32 s{sH}, s{sH}, s{sROLE}
s_mul_i32 s{sT}, s{sI}, 37
s_lshr_b32 s{sT}, s{sT}, 8
s_mul_i32 s{sT+1}, s{sT}, 7
s_sub_u32 s{sU}, s{sI}, s{sT+1}
s_lshl_b32 s{sTB64}, s{sXC}, 2
s_add_u32 s{sTB64}, s{sTB64}, s{sT}
''')
vO, vQ, vKV, vS = 16, 80, 112, 176
vIDX, vFL = 2, 3
a(f'''
v_mov_b32 v{vIDX}, 0xdddddddd
s_add_u32 s{sT}, s{sH}, 16
s_mul_i32 s{sT}, s{sT}, 43
s_lshr_b32 s{sT}, s{sT}, 8
s_lshl_b32 s{sT}, s{sT}, 4
s_add_u32 s{sT+1}, s{sH}, 32
s_mul_i32 s{sT+1}, s{sT+1}, 43
s_lshr_b32 s{sT+1}, s{sT+1}, 8
s_lshl_b32 s{sT+1}, s{sT+1}, 4
s_mul_i32 s{sT+2}, s{sH}, 43
s_lshr_b32 s{sT+2}, s{sT+2}, 8
s_lshl_b32 s{sT+2}, s{sT+2}, 4
s_add_u32 s{sT+2}, s{sT+2}, s{sQB}
s_lshl_b32 s79, s{sWQ}, 2
v_and_b32 v10, 3, v0
v_add_u32 v10, s79, v10
v_add_u32 v{vFL}, s{sT}, v10
s_mov_b64 exec, 0xf0
v_add_u32 v{vFL}, s{sT+1}, v10
s_mov_b64 exec, 0x100
v_mov_b32 v{vFL}, s{sT+2}
s_mov_b64 exec, 0x200
v_mov_b32 v{vFL}, s{sT}
s_mov_b64 exec, -1
v_lshlrev_b32 v{vFL}, 7, v{vFL}
v_lshlrev_b32 v11, 2, v0
''')
for i in range(0, 64, 2): a(f'v_mov_b64 v[{vO+i}:{vO+i+1}], 0')
for s in range(7):
    issued = min(6, s + DEP - 1)
    n = 10 * (issued - s) + (1 if (issued == 6 and s < 6) else 0)
    if s == 0: stamp(13)
    a(f's_waitcnt vmcnt({n})')
    if s == 0: stamp(14)
    if s == 4: stamp(15)
    if s == 6:
        D = a.newlabel('L_dbgok')
        a(f'v_cmp_ne_u32 vcc, 1, v12\ns_cbranch_vccz {D}')
        poll(11, SDBG, -1, 12)
        a.label(D)
    a('s_barrier')
    if s + DEP <= 6: p1_issue(s + DEP)
    if s + DEP == 6: a(f'buffer_load_dword v12, v11, s[{SDBG}:{SDBG+3}], 0 offen sc1')
    if s == 0: stamp(1)
stamp(2)
a('s_barrier')
if OPT['stop'] == 1: a('s_branch L_fin')
sKV, sQo = 70, 71
a(f'''
s_lshl_b32 s{sT}, s{sH}, 18
s_add_u32 s{sT}, s{sT}, {KVF}
s_lshl_b32 s{sKV}, s{sWQ}, 16
s_add_u32 s{sKV}, s{sKV}, s{sT}
s_lshl_b32 s{sT+1}, s{sH}, 17
s_lshl_b32 s{sT+2}, s{sQB}, 13
s_add_u32 s{sT+1}, s{sT+1}, s{sT+2}
s_add_u32 s{sT+1}, s{sT+1}, {QF}
''')
vRW, vRR = 4, 7
for j in range(4):
    a(f's_add_u32 s{sT+2}, s{sWQ}, {j+1}\ns_and_b32 s{sT+2}, s{sT+2}, 3')
    if j < 3: a(f's_lshl_b32 s76, s{sT+2}, 12\ns_add_u32 s76, s76, {L_RED + j*16384}\nv_add_u32 v{vRW+j}, s76, v1')
    else: a(f's_lshl_b32 s76, s{sT+2}, 12\ns_add_u32 s76, s76, {L_RED}\nv_add_u32 v{vRR}, s76, v1')
    a(f's_lshl_b32 s{sT+2}, s{sT+2}, 11\ns_add_u32 s{sQo+j}, s{sT+1}, s{sT+2}')
a(f's_mov_b32 s77, {hex(f2u(-BIAS))}')
poll(vFL, SWS, 0x3ff, 10, sleep=OPT['psleep'])
stamp(3)
kb = lambda kt: vKV + 16 * (kt % 4)
SB = lambda u: vS + 16 * (u % 4)
WSR = f's[{SWS}:{SWS+3}]'
for c in range(2): a(f'buffer_load_dwordx4 {vr(kb(3)+4*c,4)}, v1, {WSR}, s{sT} offen offset:{1024*c} sc1')
for j in range(4):
    for c in range(2): a(f'buffer_load_dwordx4 {vr(vQ+8*j+4*c,4)}, v1, {WSR}, s{sQo+j} offen offset:{1024*c} sc1')
for kt in range(3):
    for c in range(4): a(f'buffer_load_dwordx4 {vr(kb(kt)+4*c,4)}, v1, {WSR}, s{sKV} offen offset:{1024*c} sc1')
    a(f's_add_u32 s{sKV}, s{sKV}, 4096')
for j in range(4):
    a(f's_waitcnt vmcnt({18-2*j})')
    a(f'{MF} {vr(SB(j),16)}, {vr(kb(3),4)}, {vr(vQ+8*j,4)}, 0')
    a(f'{MF} {vr(SB(j),16)}, {vr(kb(3)+4,4)}, {vr(vQ+8*j+4,4)}, {vr(SB(j),16)}')
a('s_nop 5')
def tile_max(b, d):
    a(f'v_max3_f32 v{d}, v{b}, v{b+1}, v{b+2}')
    for i in range(3, 15, 2): a(f'v_max3_f32 v{d}, v{d}, v{b+i}, v{b+i+1}')
    a(f'v_max_f32 v{d}, v{d}, v{b+15}')
for j in range(4):
    tile_max(SB(j), 8 + j)
    a(f'v_mov_b32 v{240+j}, v{8+j}')
a('s_nop 0')
for j in range(4): a(f'v_permlane32_swap_b32 v{8+j}, v{240+j}')
for j in range(4): a(f'v_max_f32 v{8+j}, v{8+j}, v{240+j}')
a('s_mov_b32 exec_lo, 0')
for j in range(4): a(f'v_cvt_pk_bf16_f32 v{vQ+8*j+6}, -v{8+j}, s77')
a('s_mov_b32 exec_lo, -1')
a('s_waitcnt vmcnt(8)')
for u in range(2):
    a(f'{MF} {vr(SB(u),16)}, {vr(kb(0),4)}, {vr(vQ+8*u,4)}, 0')
    a(f'{MF} {vr(SB(u),16)}, {vr(kb(0)+4,4)}, {vr(vQ+8*u+4,4)}, {vr(SB(u),16)}')
a('s_nop 9')
stamp(4)
NKT = 16; NU = 4 * NKT
def E(u, lo, hi):
    for i in range(lo, hi): a(f'v_exp_f32 v{SB(u)+i}, v{SB(u)+i}')
def redw(j, q):
    a(f'ds_write_b128 v{vRW+j}, {vr(vO+16*j+4*q,4)} offset:{1024*q}')
for u in range(NU):
    kt, j = u >> 2, u & 3
    u2 = u + 2
    E(u, 0, 2)
    if u > 0: a(f'{SM} {vr(vO+16*((u-1)&3),16)}, {vr(kb((u-1)>>2)+12,4)}, {vr(SB(u-1)+8,8)}, v{vIDX}')
    if kt + 3 < NKT: a(f'buffer_load_dwordx4 {vr(kb(kt+3)+4*j,4)}, v1, {WSR}, s{sKV} offen offset:{j*1024} sc1')
    if u >= NU - 2: redw(u - (NU - 2), 0)
    E(u, 2, 6)
    if u2 < NU: a(f'{MF} {vr(SB(u2),16)}, {vr(kb(u2>>2),4)}, {vr(vQ+8*(u2&3),4)}, 0')
    if j == 3 and kt + 4 < NKT: a(f's_add_u32 s{sKV}, s{sKV}, 4096')
    if u >= NU - 2: redw(u - (NU - 2), 1)
    E(u, 6, 10)
    a(f'{SM} {vr(vO+16*j,16)}, {vr(kb(kt)+8,4)}, {vr(SB(u),8)}, v{vIDX}')
    if u >= NU - 2: redw(u - (NU - 2), 2)
    E(u, 10, 14)
    if u2 < NU: a(f'{MF} {vr(SB(u2),16)}, {vr(kb(u2>>2)+4,4)}, {vr(vQ+8*(u2&3)+4,4)}, {vr(SB(u2),16)}')
    if j == 1 and kt + 1 < NKT:
        n = (4 if kt + 2 < NKT else 0) + (2 if kt + 3 < NKT else 0)
        a(f's_waitcnt vmcnt({n})')
    if u >= NU - 2: redw(u - (NU - 2), 3)
    E(u, 14, 16)
redw(2, 0); redw(2, 1)
a(f'{SM} {vr(vO+48,16)}, {vr(kb(NKT-1)+12,4)}, {vr(SB(NU-1)+8,8)}, v{vIDX}')
redw(2, 2); redw(2, 3)
sOo, sFo, sOl = 70, 71, 72
a(f'''
s_lshl_b32 s{sT}, s{sQB}, 2
s_add_u32 s{sT}, s{sT}, s{sWQ}
s_lshl_b32 s{sOo}, s{sT}, 4
s_add_u32 s{sOo}, s{sOo}, s{sH}
s_lshl_b32 s{sOo}, s{sOo}, 11
s_add_u32 s{sOo}, s{sOo}, {OF}
s_lshl_b32 s{sT}, s{sT}, 8
s_lshr_b32 s{sT+1}, s{sH}, 3
s_lshl_b32 s{sT+1}, s{sT+1}, 7
s_add_u32 s{sT}, s{sT}, s{sT+1}
s_and_b32 s{sT+1}, s{sH}, 7
s_lshl_b32 s{sT+1}, s{sT+1}, 2
s_add_u32 s{sT}, s{sT}, s{sT+1}
s_add_u32 s{sFo}, s{sT}, {FOA}
s_waitcnt lgkmcnt(0)
''')
stamp(5)
if OPT['prio']: a('s_setprio 2')
a('s_barrier')
stamp(11)
for j in range(3):
    for q in range(4): a(f'ds_read_b128 {vr(vS+16*j+4*q,4)}, v{vRR} offset:{j*16384+q*1024}')
vA = vO + 48
for j in range(3):
    for q in range(4):
        a(f's_waitcnt lgkmcnt({11-4*j-q})')
        for e in (0, 2): a(f'v_pk_add_f32 {vr(vA+4*q+e,2)}, {vr(vA+4*q+e,2)}, {vr(vS+16*j+4*q+e,2)}')
a.label('L_norm')
a(f'''
v_mov_b32 v8, v{vA+12}
v_mov_b32 v9, v{vA+12}
s_mov_b32 exec_lo, 0
v_mov_b64 v[{vA+12}:{vA+13}], 0
v_mov_b64 v[{vA+14}:{vA+15}], 0
s_mov_b32 exec_lo, -1
v_permlane32_swap_b32 v8, v9
v_rcp_f32 v10, v9
v_maximum3_f32 v8, |v{vA}|, |v{vA+1}|, v9
''')
for i in range(2, 16, 2): a(f'v_maximum3_f32 v8, |v{vA+i}|, |v{vA+i+1}|, v8')
for i in range(0, 16, 2): a(f'v_pk_mul_f32 {vr(vA+i,2)}, {vr(vA+i,2)}, v[10:11] op_sel_hi:[1,0]')
a(f'''
s_mov_b32 s{sT}, {hex(f2u(2.0**120))}
s_mov_b32 s{sT+1}, {hex(f2u(2.0**-64))}
v_cmp_nlt_f32 vcc, v8, s{sT}
v_cmp_ngt_f32 s[76:77], v9, s{sT+1}
''')
for i in range(8): a(f'v_cvt_pk_bf16_f32 v{vS+i}, v{vA+2*i}, v{vA+2*i+1}')
a('s_or_b64 vcc, vcc, s[76:77]')
if OPT['force_fb']: a('s_mov_b64 vcc, 1')
a('s_cbranch_vccnz L_fallback')
a.label('L_ostore')
stamp(12)
for c in range(2): a(f'buffer_store_dwordx4 {vr(vS+4*c,4)}, v1, {WSR}, s{sOo} offen offset:{1024*c} sc1')
a(f'''
v_add_u32 v4, 6144, v{vWO}
v_add_u32 v5, 12288, v{vWO}
v_add_u32 v6, 18432, v{vWO}
s_mul_i32 s{sT}, s{sWQ}, {32*896}
s_lshl_b32 s{sT+1}, s{sU}, 7
s_add_u32 s{sT}, s{sT}, s{sT+1}
s_add_u32 s{sT}, s{sT}, {320*896}
s_lshl_b32 s{sT+1}, s{sWQ}, 12
s_add_u32 m0, s{sT+1}, {L_RED}
s_nop 0
buffer_load_dwordx4 v{vWO}, s[{SWOA}:{SWOA+3}], s{sT} offen lds
buffer_load_dwordx4 v4, s[{SWOA}:{SWOA+3}], s{sT} offen offset:1024 lds
buffer_load_dwordx4 v5, s[{SWOA}:{SWOA+3}], s{sT} offen offset:2048 lds
buffer_load_dwordx4 v6, s[{SWOA}:{SWOA+3}], s{sT} offen offset:3072 lds
''')
vPA, vPX, vPO, vPF = 4, 8, 10, 11
vOF, vAC, vWF = 112, 176, 208
def p3_setup(br, img, exch):
    a(f'''
    s_and_b32 s78, s{sWQ}, 1
    s_lshr_b32 s79, s{sWQ}, 1
    v_bfe_u32 v12, v0, 2, 2
    v_and_b32 v13, 3, v0
    v_lshlrev_b32 v13, 3, v13
    v_bfe_u32 v14, v0, 4, 1
    v_lshl_or_b32 v13, v14, 5, v13
    v_lshrrev_b32 v14, 1, v12
    v_xor_b32 v14, s79, v14
    v_lshl_or_b32 v13, v14, 6, v13
    v_lshl_or_b32 v13, v12, 7, v13
    s_mul_i32 s80, s79, {224*128}
    s_add_u32 s80, s80, {img}
    v_add_u32 v{vPA+2}, s80, v13
    v_xor_b32 v13, 64, v13
    v_add_u32 v{vPA+3}, s80, v13
    v_lshrrev_b32 v14, 5, v0
    v_lshlrev_b32 v12, 9, v14
    v_add_u32 v{vPA}, v{vPA+2}, v12
    v_add_u32 v{vPA+1}, v{vPA+3}, v12
    s_lshl_b32 s80, s{sWQ}, 12
    s_add_u32 s80, s80, {exch}
    v_add_u32 v{vPX}, s80, v1
    s_xor_b32 s80, s{sWQ}, 2
    s_lshl_b32 s80, s80, 12
    s_add_u32 s80, s80, {exch}
    v_add_u32 v{vPX+1}, s80, v1
    v_and_b32 v12, 31, v0
    ''')
    if br == 0:
        a('''
        v_and_b32 v13, 19, v12
        v_bfe_u32 v11, v12, 2, 1
        v_lshl_or_b32 v13, v11, 3, v13
        v_bfe_u32 v11, v12, 3, 1
        v_lshl_or_b32 v12, v11, 2, v13
        ''')
    a(f'''
    v_mul_u32_u24 v12, 1792, v12
    v_lshl_add_u32 v{vPO}, v14, 4, v12
    s_lshl_b32 s80, s{sTB64}, 1
    s_add_u32 s80, s80, s78
    s_mul_i32 s81, s80, {32*1792}
    s_lshl_b32 s82, s{sU}, 7
    s_add_u32 s81, s81, s82
    s_lshl_b32 s82, s79, 6
    s_add_u32 s81, s81, s82
    s_add_u32 s81, s81, {br*896}
    s_lshl_b32 s82, s80, 15
    s_lshl_b32 s83, s79, 14
    s_add_u32 s82, s82, s83
    s_add_u32 s82, s82, {OF + br*0x200000}
    ''')
    if br == 0: a(f's_lshl_b32 s83, s80, 8\ns_lshl_b32 s84, s79, 7\ns_add_u32 s83, s83, s84\ns_add_u32 s83, s83, {FOA}')
    else: a(f's_lshl_b32 s83, s{sTB64}, 8\ns_lshl_b32 s84, s79, 7\ns_add_u32 s83, s83, s84\ns_add_u32 s83, s83, {FOB}')
    a(f'v_lshlrev_b32 v{vPF}, 2, v0\nv_add_u32 v{vPF}, s83, v{vPF}')
def p3_loads():
    for n in range(16):
        a(f'buffer_load_dwordx4 {vr(vOF+4*n,4)}, v1, {WSR}, s82 offen offset:{1024*(n%4)} sc1')
        if n % 4 == 3 and n < 15: a('s_add_u32 s82, s82, 4096')
p3_setup(0, L_WOA, L_TX)
a('s_waitcnt vmcnt(4)')
setflag(sFo, 12, 13)
stamp(6)
a(f's_cmp_ge_u32 s{sI}, 28\ns_cbranch_scc1 L_fin')
if OPT['stop'] == 2: a('s_branch L_fin')
poll(vPF, SWS, 0xff, 12, sleep=OPT['psleep'])
stamp(7)
p3_loads()
a('s_barrier')
a.label('L_p3')
def wo_reads(n):
    hl, c = n >> 1, n & 1
    for aa in range(2):
        for jj in range(2):
            ad = vPA + aa + (2 if (c == 1 and jj == 1) else 0)
            a(f'ds_read_b64_tr_b16 {vr(vWF+16*(n&1)+4*aa+2*jj,2)}, v{ad} offset:{(28*hl+16*c+8*jj)*128}')
wo_reads(0)
for n in range(16):
    if n < 15: wo_reads(n + 1)
    a(f's_waitcnt vmcnt({15-n}) lgkmcnt({4 if n < 15 else 0})')
    for aa in (1, 0):
        a(f'{MF} {vr(vAC+16*aa,16)}, {vr(vWF+16*(n&1)+4*aa,4)}, {vr(vOF+4*n,4)}, {vr(vAC+16*aa,16) if n else 0}')
a('s_nop 10')
for q in range(4): a(f'ds_write_b128 v{vPX}, {vr(vAC+16+4*q,4)} offset:{1024*q}')
a('s_waitcnt lgkmcnt(0)\ns_barrier')
for q in range(4): a(f'ds_read_b128 {vr(vAC+16+4*q,4)}, v{vPX+1} offset:{1024*q}')
for q in range(4):
    a(f's_waitcnt lgkmcnt({3-q})')
    for e in (0, 2): a(f'v_pk_add_f32 {vr(vAC+4*q+e,2)}, {vr(vAC+4*q+e,2)}, {vr(vAC+16+4*q+e,2)}')
for i in range(8): a(f'v_cvt_pk_bf16_f32 v{vWF+i}, v{vAC+2*i}, v{vAC+2*i+1}')
a(f'''
v_permlane32_swap_b32 v{vWF}, v{vWF+2}
v_permlane32_swap_b32 v{vWF+1}, v{vWF+3}
v_permlane32_swap_b32 v{vWF+4}, v{vWF+6}
v_permlane32_swap_b32 v{vWF+5}, v{vWF+7}
buffer_store_dwordx4 {vr(vWF,4)}, v{vPO}, s[{SOUT}:{SOUT+3}], s81 offen
buffer_store_dwordx4 {vr(vWF+4,4)}, v{vPO}, s[{SOUT}:{SOUT+3}], s81 offen offset:32
''')
a.label('L_fin')
if OPT['stamp']:
    stamp(8)
    a('s_waitcnt vmcnt(0)')
    stamp(9)
    stamp_out()
    if OPT['probe'] >= 0:
        a(f's_cmp_{"lt" if OPT["probeT"] else "ge"}_u32 s{sW}, 4\ns_cbranch_scc1 L_end')
        a(f'v_readlane_b32 s80, v254, {OPT["probe"]}\ns_nop 3\ns_cmp_eq_u32 s80, 0\ns_cbranch_scc1 L_end\ns_add_u32 s80, s80, 6000')
        a('L_probe:\ns_sleep 2\ns_memrealtime s[88:89]\ns_waitcnt lgkmcnt(0)\ns_sub_u32 s81, s88, s80\ns_cmp_lt_i32 s81, 0\ns_cbranch_scc1 L_probe')
a.label('L_end')
a('s_endpgm')

a.label('L_fallback')
Q3 = vQ + 24
a(f'''
s_mov_b32 exec_lo, 0
v_mov_b32 v{Q3+6}, 0
s_mov_b32 exec_lo, -1
s_lshl_b32 s76, s{sH}, 18
s_add_u32 s76, s76, {KVF}
s_mov_b32 s77, s76
s_add_u32 s78, s76, {64*4096}
v_mov_b32 v12, 0xff800000
''')
a.label('L_fb1')
a(f'''
buffer_load_dwordx4 {vr(vKV,4)}, v1, {WSR}, s77 offen sc1
buffer_load_dwordx4 {vr(vKV+4,4)}, v1, {WSR}, s77 offen offset:1024 sc1
s_waitcnt vmcnt(0)
{MF} {vr(vS,16)}, {vr(vKV,4)}, {vr(Q3,4)}, 0
{MF} {vr(vS,16)}, {vr(vKV+4,4)}, {vr(Q3+4,4)}, {vr(vS,16)}
s_nop 11
''')
for i in range(0, 16, 2): a(f'v_max3_f32 v12, v12, v{vS+i}, v{vS+i+1}')
a(f'''
s_add_u32 s77, s77, 4096
s_cmp_lt_u32 s77, s78
s_cbranch_scc1 L_fb1
v_mov_b32 v13, v12
s_nop 1
v_permlane32_swap_b32 v12, v13
v_max_f32 v12, v12, v13
''')
for i in range(0, 16, 2): a(f'v_mov_b64 v[{vA+i}:{vA+i+1}], 0')
a.label('L_fb2')
for c in range(4): a(f'buffer_load_dwordx4 {vr(vKV+4*c,4)}, v1, {WSR}, s76 offen offset:{1024*c} sc1')
a(f'''
s_waitcnt vmcnt(0)
{MF} {vr(vS,16)}, {vr(vKV,4)}, {vr(Q3,4)}, 0
{MF} {vr(vS,16)}, {vr(vKV+4,4)}, {vr(Q3+4,4)}, {vr(vS,16)}
s_nop 11
''')
for i in range(16): a(f'v_sub_f32 v{vS+i}, v{vS+i}, v12')
for i in range(16): a(f'v_exp_f32 v{vS+i}, v{vS+i}')
a(f'''
s_nop 1
{SM} {vr(vA,16)}, {vr(vKV+8,4)}, {vr(vS,8)}, v{vIDX}
{SM} {vr(vA,16)}, {vr(vKV+12,4)}, {vr(vS+8,8)}, v{vIDX}
s_add_u32 s76, s76, 4096
s_cmp_lt_u32 s76, s78
s_cbranch_scc1 L_fb2
s_nop 11
v_mov_b32 v8, v{vA+12}
v_mov_b32 v9, v{vA+12}
s_mov_b32 exec_lo, 0
v_mov_b64 v[{vA+12}:{vA+13}], 0
v_mov_b64 v[{vA+14}:{vA+15}], 0
s_mov_b32 exec_lo, -1
v_permlane32_swap_b32 v8, v9
v_rcp_f32 v10, v9
s_nop 0
''')
for i in range(0, 16, 2): a(f'v_pk_mul_f32 {vr(vA+i,2)}, {vr(vA+i,2)}, v[10:11] op_sel_hi:[1,0]')
for i in range(8): a(f'v_cvt_pk_bf16_f32 v{vS+i}, v{vA+2*i}, v{vA+2*i+1}')
a('s_branch L_ostore')

a.label('L_G')
stamp(11)
vXR, vXR2, vWR, vWR2 = 4, 8, 12, 13
vACC, vFR, vPR, vPH = 16, 112, 152, 168
sTH, sSG, sHB = 70, 71, 72
a(f'''
s_lshr_b32 s{sTH}, s{sWQ}, 1
s_and_b32 s{sSG}, s{sWQ}, 1
s_getpc_b64 s[76:77]
L_pc:
s_sub_u32 s76, s76, L_pc-{NAME}_kernel
s_subb_u32 s77, s77, 0
s_lshl_b32 s{sT}, s{sI}, 2
s_add_u32 s{sT}, s{sT}, s{sWQ}
s_mulk_i32 s{sT}, 384
v_lshlrev_b32 v2, 7, v0
v_add_u32 v2, s{sT}, v2
v_min_u32 v2, L_code_end-{NAME}_kernel-4, v2
s_mov_b64 exec, 7
global_load_dword v255, v2, s[76:77]
s_mov_b64 exec, -1
v_and_b32 v14, 31, v0
v_lshrrev_b32 v15, 5, v0
v_bfe_u32 v2, v14, 1, 3
v_xor_b32 v2, v2, v15
v_lshlrev_b32 v2, 4, v2
v_lshl_or_b32 v2, v14, 7, v2
s_lshl_b32 s{sT}, s{sTH}, 13
v_add_u32 v{vXR}, s{sT}, v2
v_xor_b32 v{vXR+1}, 32, v{vXR}
v_xor_b32 v{vXR+2}, 64, v{vXR}
v_xor_b32 v{vXR+3}, 96, v{vXR}
v_add_u32 v{vXR2}, {2*STG}, v{vXR}
v_add_u32 v{vXR2+1}, {2*STG}, v{vXR+1}
v_add_u32 v{vXR2+2}, {2*STG}, v{vXR+2}
v_add_u32 v{vXR2+3}, {2*STG}, v{vXR+3}
v_bfe_u32 v2, v0, 2, 2
v_and_b32 v{vWR}, 3, v0
v_lshlrev_b32 v{vWR}, 3, v{vWR}
v_bfe_u32 v{vWR2}, v0, 4, 1
v_lshl_or_b32 v{vWR}, v{vWR2}, 5, v{vWR}
s_mul_i32 s{sT}, s{sSG}, 56
v_add_u32 v{vWR}, s{sT}, v{vWR}
v_lshrrev_b32 v{vWR2}, 1, v2
v_lshlrev_b32 v{vWR2}, 6, v{vWR2}
v_xor_b32 v{vWR}, v{vWR}, v{vWR2}
v_lshl_add_u32 v2, v15, 3, v2
v_lshl_add_u32 v{vWR}, v2, 7, v{vWR}
v_add_u32 v{vWR}, 16384, v{vWR}
v_add_u32 v{vWR2}, {2*STG}, v{vWR}
s_waitcnt lgkmcnt(0)
''')
srd(SWS, 22, WS_SIZE); srd(SDBG, 20, 256)
a(f'''
s_cmp_ge_u32 s2, 16
s_cbranch_scc1 L_noclear
s_lshl_b32 s{sT}, s2, 2
s_add_u32 s{sT}, s{sT}, s{sWQ}
s_mul_i32 s{sT+1}, s{sT}, 3072
s_lshl_b32 s{sT}, s{sT}, 2
v_mov_b64 v[16:17], 0
v_mov_b64 v[18:19], 0
buffer_store_dwordx4 v[16:19], v1, {WSR}, s{sT+1} offen sc1
buffer_store_dwordx4 v[16:19], v1, {WSR}, s{sT+1} offen offset:1024 sc1
buffer_store_dwordx4 v[16:19], v1, {WSR}, s{sT+1} offen offset:2048 sc1
v_mov_b32 v2, 1
s_waitcnt vmcnt(0)
s_mov_b64 exec, 1
buffer_store_dword v2, v16, s[{SDBG}:{SDBG+3}], s{sT} offen sc1
s_mov_b64 exec, -1
L_noclear:
''')
stamp(12)
srd(SOUT, 18, 3670016); srd(SWOA, 8, 401408); srd(SWOB, 16, 401408); srd(SPHI, 14, 25088)
a(f'''
s_mul_i32 s{sT}, s{sI}, 37
s_lshr_b32 s{sT}, s{sT}, 8
s_mul_i32 s{sT+1}, s{sT}, 7
s_sub_u32 s{sU}, s{sI}, s{sT+1}
s_lshl_b32 s{sTB64}, s{sXC}, 2
s_add_u32 s{sTB64}, s{sTB64}, s{sT}
s_lshl_b32 s{sHB}, s{sGRP}, 1
s_add_u32 s{sHB}, s{sHB}, s{sSG}
s_cmp_eq_u32 s{sROLE}, 1
s_cbranch_scc1 L_GB
s_cmp_ge_u32 s{sGRP}, 6
s_cbranch_scc1 L_G_NNN
s_cmp_eq_u32 s{sGRP}, 5
s_cbranch_scc1 L_G_TNN
''')
acc = lambda tt, j: vACC + 16 * (2 * j + tt)
xf = lambda b, tt: vFR + 20 * b + 4 * tt
wf = lambda b, j: vFR + 20 * b + 8 + 4 * j
def gemm(pat, bar7):
    def rd_x(n, tt):
        s, ks = n >> 2, n & 3
        b = stg_base(s); hi = b >= 2 * STG
        a(f'ds_read_b128 {vr(xf(n&1,tt),4)}, v{(vXR2 if hi else vXR)+ks} offset:{b % (2*STG) + tt*4096}')
    def rd_w(n, j):
        s, ks = n >> 2, n & 3
        b = stg_base(s); hi = b >= 2 * STG
        for jj in range(2):
            a(f'ds_read_b64_tr_b16 {vr(wf(n&1,j)+2*jj,2)}, v{vWR2 if hi else vWR} offset:{b % (2*STG) + j*8192 + ks*2048 + jj*512}')
    def mf(n, j, tt):
        A, B = (wf(n&1,j), xf(n&1,tt)) if pat[j] == 'T' else (xf(n&1,tt), wf(n&1,j))
        a(f'{MF} {vr(acc(tt,j),16)}, {vr(A,4)}, {vr(B,4)}, {vr(acc(tt,j),16) if n else 0}')
    stamp(13)
    a('s_barrier')
    stamp(1)
    rd_x(0, 0); rd_x(0, 1); rd_w(0, 0); rd_w(0, 1); rd_w(0, 2)
    for n in range(28):
        last = n == 27
        bnd = (n & 3) == 3
        if not bnd:
            a('s_waitcnt lgkmcnt(4)')
            mf(n, 0, 0); rd_x(n+1, 0); rd_x(n+1, 1)
            mf(n, 0, 1); rd_w(n+1, 0)
            a('s_waitcnt lgkmcnt(6)')
            mf(n, 1, 0); rd_w(n+1, 1)
            mf(n, 1, 1); rd_w(n+1, 2)
            a('s_waitcnt lgkmcnt(8)')
            mf(n, 2, 0); mf(n, 2, 1)
        else:
            a('s_waitcnt lgkmcnt(4)')
            mf(n, 0, 0); mf(n, 0, 1)
            a('s_waitcnt lgkmcnt(0)')
            mf(n, 1, 0)
            if not last or bar7: a('s_barrier')
            if not last: rd_x(n+1, 0); rd_x(n+1, 1); rd_w(n+1, 0)
            mf(n, 1, 1)
            if not last: rd_w(n+1, 1)
            mf(n, 2, 0)
            if not last: rd_w(n+1, 2)
            mf(n, 2, 1)
    stamp(2)
vPI = 14
def epiA_setup():
    a(f'''
    v_and_b32 v2, 51, v0
    v_bfe_u32 v3, v0, 2, 1
    v_lshl_or_b32 v2, v3, 3, v2
    v_bfe_u32 v3, v0, 3, 1
    v_lshl_or_b32 v2, v3, 2, v2
    v_lshlrev_b32 v{vPI}, 4, v2
    s_mul_i32 s73, s{sGRP}, 6
    s_add_u32 s73, s73, s{sSG}
    s_lshl_b32 s74, s{sTB}, 2
    s_lshl_b32 s75, s{sTH}, 1
    s_add_u32 s74, s74, s75
    ''')
def epiA(j, typ):
    a(f'''
    s_add_u32 s76, s73, {2*j}
    s_and_b32 s77, s76, 15
    s_lshl_b32 s77, s77, 6
    s_add_u32 s77, s77, s74
    ''')
    P = vFR + 16 * (j & 1)
    if typ == 'T':
        a(f'''
        s_cmp_lt_u32 s76, 16
        s_cselect_b32 s78, 11, 12
        s_cselect_b32 s79, {QF >> 20}, {KVF >> 20}
        s_cselect_b32 s80, {hex(QSCALE)}, 1.0
        s_cselect_b32 s82, 0, 0x3f803f80
        s_lshl_b32 s77, s77, s78
        s_lshl_b32 s79, s79, 20
        s_add_u32 s77, s77, s79
        s_lshl_b32 s78, 1, s78
        s_add_u32 s78, s78, s77
        ''')
        for tt in range(2):
            A = acc(tt, j); p = P + 8 * tt
            for i in range(0, 16, 2): a(f'v_pk_mul_f32 {vr(A+i,2)}, {vr(A+i,2)}, s[80:81] op_sel_hi:[1,0]')
            for i in range(8): a(f'v_cvt_pk_bf16_f32 v{p+i}, v{A+2*i}, v{A+2*i+1}')
            a(f's_mov_b32 exec_lo, 0\nv_mov_b32 v{p+6}, s82\nv_mov_b32 v{p+7}, 0\ns_mov_b32 exec_lo, -1')
            for c in range(2): a(f'buffer_store_dwordx4 {vr(p+4*c,4)}, v{vPI}, {WSR}, s{77+tt} offen offset:{1024*c} sc1')
    else:
        a(f'''
        s_lshl_b32 s77, s77, 12
        s_add_u32 s77, s77, {KVF}
        s_add_u32 s78, s77, 4096
        s_mov_b32 s80, 0x3f803f80
        s_mov_b32 s81, 0x3f803f80
        ''')
        for tt in range(2):
            A = acc(tt, j); p = P + 8 * tt
            for i in range(8): a(f'v_cvt_pk_bf16_f32 v{p+i}, v{A+2*i}, v{A+2*i+1}')
            a('s_mov_b32 exec_lo, 0x10000000\ns_mov_b32 exec_hi, 0x10000000')
            for i in range(0, 8, 2): a(f'v_mov_b64 v[{p+i}:{p+i+1}], s[80:81]')
            a('s_mov_b64 exec, -1')
            for c in range(2): a(f'buffer_store_dwordx4 {vr(p+4*c,4)}, v1, {WSR}, s{77+tt} offen offset:{2048+1024*c} sc1')
for pat in ('TTT', 'TNN', 'NNN'):
    a.label('L_G_' + pat)
    epiA_setup()
    gemm(pat, False)
    a('s_nop 3')
    for j in range(3): epiA(j, pat[j])
    if pat != 'NNN': a('s_branch L_GA_done')
a.label('L_GA_done')
a(f'''
s_lshl_b32 s76, s{sGRP}, 4
s_add_u32 s76, s76, s{sTB}
s_lshl_b32 s76, s76, 7
s_waitcnt vmcnt(0)
s_barrier
s_cmp_lg_u32 s{sW}, 0
s_cbranch_scc1 L_GA_nf
''')
setflag(76, 2, 3)
a.label('L_GA_nf')
stamp(3)
a('s_branch L_G_common')

a.label('L_GB')
a(f'''
v_and_b32 v14, 31, v0
v_lshrrev_b32 v15, 5, v0
v_mul_u32_u24 v2, 224, v15
v_lshl_add_u32 v2, v14, 1, v2
v_mov_b32 v3, 0x10000000
v_cmp_gt_u32 vcc, 28, v14
s_mul_i32 s76, s{sHB}, 1568
s_nop 0
v_cndmask_b32 v2, v3, v2, vcc
s_mov_b32 exec_hi, 0
v_mov_b32 v3, v2
s_mov_b32 exec_hi, -1
''')
for c in range(2):
    for jj in range(2):
        for e in range(4):
            a(f'buffer_load_ushort v{vPR+8*c+4*jj+e}, v{3 if (c and jj) else 2}, s[{SPHI}:{SPHI+3}], s76 offen offset:{(16*c+8*jj+e)*56}')
gemm('TTN', True)
a('s_waitcnt vmcnt(0)')
for i in range(8): a(f'v_lshl_or_b32 v{vPH+i}, v{vPR+2*i+1}, 16, v{vPR+2*i}')
vY, vEP, vEN, vPK = 112, 128, 144, 160
vFQ = 176
vKA = 208
a(f's_mov_b32 s76, {hex(f2u(LOG2E))}\ns_mov_b32 s77, {hex(f2u(LOG2E))}')
def features(X, out):
    for i in range(8): a(f'v_cvt_pk_bf16_f32 v{vPK+i}, v{X+2*i}, v{X+2*i+1}')
    a(f's_mov_b32 exec_lo, 0\nv_mov_b64 v[{vPK+6}:{vPK+7}], 0\ns_mov_b32 exec_lo, -1')
    a(f'{MF} {vr(vY,16)}, {vr(vPH,4)}, {vr(vPK,4)}, 0')
    a(f'{MF} {vr(vY,16)}, {vr(vPH+4,4)}, {vr(vPK+4,4)}, {vr(vY,16)}')
    a('s_nop 11')
    a(f'v_max3_f32 v4, v{vY}, v{vY+1}, v{vY+2}\nv_min3_f32 v6, v{vY}, v{vY+1}, v{vY+2}')
    for i in range(3, 11, 2): a(f'v_max3_f32 v4, v4, v{vY+i}, v{vY+i+1}\nv_min3_f32 v6, v6, v{vY+i}, v{vY+i+1}')
    a(f'v_max_f32 v4, v4, v{vY+11}\nv_min_f32 v6, v6, v{vY+11}')
    a('s_mov_b32 exec_hi, 0')
    for i in (12, 14): a(f'v_max3_f32 v4, v4, v{vY+i}, v{vY+i+1}\nv_min3_f32 v6, v6, v{vY+i}, v{vY+i+1}')
    a(f'''
    s_mov_b32 exec_hi, -1
    v_mov_b32 v5, v4
    v_mov_b32 v7, v6
    s_nop 0
    v_permlane32_swap_b32 v4, v5
    v_permlane32_swap_b32 v6, v7
    v_max_f32 v4, v4, v5
    v_min_f32 v6, v6, v7
    v_mul_f32 v4, s76, v4
    v_mul_f32 v6, s76, v6
    ''')
    for i in range(0, 16, 2):
        a(f'v_pk_fma_f32 {vr(vEP+i,2)}, {vr(vY+i,2)}, s[76:77], v[4:5] op_sel_hi:[1,1,0] neg_lo:[0,0,1] neg_hi:[0,0,1]')
        a(f'v_pk_fma_f32 {vr(vEN+i,2)}, {vr(vY+i,2)}, s[76:77], v[6:7] op_sel_hi:[1,1,0] neg_lo:[1,0,0] neg_hi:[1,0,0]')
    for i in range(16): a(f'v_exp_f32 v{vEP+i}, v{vEP+i}')
    for i in range(16): a(f'v_exp_f32 v{vEN+i}, v{vEN+i}')
    a('s_mov_b32 exec_lo, 0')
    for b in (vEP, vEN): a(f'v_mov_b64 v[{b+12}:{b+13}], 0\nv_mov_b64 v[{b+14}:{b+15}], 0')
    a('s_mov_b32 exec_lo, -1')
    a(f'v_pk_add_f32 v[4:5], {vr(vEP,2)}, {vr(vEP+2,2)}\nv_pk_add_f32 v[6:7], {vr(vEN,2)}, {vr(vEN+2,2)}')
    for i in range(4, 16, 2): a(f'v_pk_add_f32 v[4:5], v[4:5], {vr(vEP+i,2)}\nv_pk_add_f32 v[6:7], v[6:7], {vr(vEN+i,2)}')
    a(f'''
    v_add_f32 v4, v4, v5
    v_add_f32 v6, v6, v7
    v_mov_b32 v5, v4
    v_mov_b32 v7, v6
    s_nop 0
    v_permlane32_swap_b32 v4, v5
    v_permlane32_swap_b32 v6, v7
    v_add_f32 v4, v4, v5
    v_add_f32 v6, v6, v7
    v_rcp_f32 v4, v4
    v_rcp_f32 v6, v6
    ''')
    for i in range(0, 16, 2): a(f'v_pk_mul_f32 {vr(vEP+i,2)}, {vr(vEP+i,2)}, v[4:5] op_sel_hi:[1,0]')
    for i in range(0, 16, 2): a(f'v_pk_mul_f32 {vr(vEN+i,2)}, {vr(vEN+i,2)}, v[6:7] op_sel_hi:[1,0]')
    for i in range(8): a(f'v_cvt_pk_bf16_f32 v{out+i}, v{vEP+2*i}, v{vEP+2*i+1}')
    for i in range(8): a(f'v_cvt_pk_bf16_f32 v{out+8+i}, v{vEN+2*i}, v{vEN+2*i+1}')
a(f'''
s_lshl_b32 s78, s{sWQ}, 12
s_add_u32 s78, s78, {L_GX}
v_and_b32 v14, 31, v0
v_lshrrev_b32 v15, 5, v0
v_bfe_u32 v2, v14, 1, 3
v_xor_b32 v2, v2, v15
v_lshlrev_b32 v2, 3, v2
v_lshl_or_b32 v2, v14, 6, v2
v_add_u32 v8, s78, v2
v_xor_b32 v9, 16, v8
v_xor_b32 v10, 32, v8
v_xor_b32 v11, 48, v8
v_bfe_u32 v2, v0, 2, 2
v_lshl_add_u32 v2, v15, 2, v2
v_and_b32 v3, 3, v0
v_bfe_u32 v14, v0, 4, 1
v_lshl_or_b32 v3, v14, 2, v3
v_lshrrev_b32 v14, 1, v2
v_xor_b32 v3, v3, v14
v_lshlrev_b32 v3, 3, v3
v_lshl_or_b32 v3, v2, 6, v3
v_add_u32 v12, s78, v3
v_xor_b32 v13, 32, v12
s_mov_b32 s80, 0x3f803f80
s_mov_b32 s81, 0x3f803f80
''')
for tt in range(2):
    K = acc(tt, 1); V = acc(tt, 2)
    features(K, K)
    for s in range(2):
        for g4 in range(4): a(f'ds_write_b64 v{8+g4}, {vr(K+8*s+2*g4,2)} offset:{2048*s}')
    for i in range(8): a(f'v_cvt_pk_bf16_f32 v{V+i}, v{V+2*i}, v{V+2*i+1}')
    a('s_mov_b32 exec_lo, 0x10000000\ns_mov_b32 exec_hi, 0x10000000')
    for i in range(0, 8, 2): a(f'v_mov_b64 v[{V+i}:{V+i+1}], s[80:81]')
    a('s_mov_b64 exec, -1\ns_waitcnt lgkmcnt(0)')
    for s in range(2):
        for m in range(2):
            for jj in range(2): a(f'ds_read_b64_tr_b16 {vr(K+8*s+4*m+2*jj,2)}, v{12+jj} offset:{2048*s+1024*m+512*jj}')
    for s in range(2):
        for m in range(2):
            a(f's_waitcnt lgkmcnt({6-4*s-2*m})')
            a(f'{MF} {vr(vKA+16*s,16)}, {vr(K+8*s+4*m,4)}, {vr(V+4*m,4)}, {vr(vKA+16*s,16) if (tt or m) else 0}')
a(f'''
s_lshl_b32 s78, s{sHB}, 13
s_add_u32 s78, s78, {KVACC}
s_add_u32 s79, s78, 4096
v_lshlrev_b32 v14, 2, v0
s_nop 5
''')
for s in range(2):
    for r in range(0 if OPT['noatom'] else 16): a(f'buffer_atomic_add_f32 v{vKA+16*s+r}, v14, {WSR}, s{78+s} offen offset:{256*r}')
stamp(3)
for tt in range(2): features(acc(tt, 0), vFQ + 16 * tt)
stamp(4)
a(f'''
s_lshl_b32 s82, s{sHB}, 7
s_add_u32 s82, s82, {FKV}
v_add_u32 v15, s82, v14
s_lshl_b32 s83, s{sTB}, 1
s_add_u32 s83, s83, s{sTH}
s_lshl_b32 s84, s83, 2
s_add_u32 s82, s82, s84
s_waitcnt vmcnt(0)
''')
setflag(82, 2, 3)
stamp(5)
poll(15, SWS, 'lo', 2, sleep=4)
for s in range(2):
    for r in range(16): a(f'buffer_load_dword v{vKA+16*s+r}, v14, {WSR}, s{78+s} offen offset:{256*r} sc1')
a(f'''
s_lshl_b32 s78, s83, 5
s_add_u32 s78, s78, s{sHB}
s_lshl_b32 s78, s78, 11
s_add_u32 s78, s78, {OF + 0x200000}
s_add_u32 s79, s78, 32768
s_lshl_b32 s82, s83, 8
s_lshr_b32 s84, s{sHB}, 3
s_lshl_b32 s84, s84, 7
s_add_u32 s82, s82, s84
s_and_b32 s84, s{sHB}, 7
s_lshl_b32 s84, s84, 2
s_add_u32 s82, s82, s84
s_add_u32 s82, s82, {FOB}
s_waitcnt vmcnt(0)
''')
for i in range(16): a(f'v_cvt_pk_bf16_f32 v{16+i}, v{vKA+2*i}, v{vKA+2*i+1}')
for tt in range(2):
    for q in range(4):
        a(f'{MF} {vr(vY+16*tt,16)}, {vr(16+4*q,4)}, {vr(vFQ+16*tt+4*q,4)}, {vr(vY+16*tt,16) if q else 0}')
a('s_nop 7')
for tt in range(2):
    N = vY + 16 * tt; p = 32 + 8 * tt
    a(f'''
    v_mov_b32 v4, v{N+12}
    v_mov_b32 v5, v{N+12}
    s_nop 1
    v_permlane32_swap_b32 v4, v5
    v_add_f32 v4, {hex(f2u(1e-6))}, v5
    v_rcp_f32 v4, v4
    s_nop 0
    ''')
    for i in range(0, 16, 2): a(f'v_pk_mul_f32 {vr(N+i,2)}, {vr(N+i,2)}, v[4:5] op_sel_hi:[1,0]')
    for i in range(8): a(f'v_cvt_pk_bf16_f32 v{p+i}, v{N+2*i}, v{N+2*i+1}')
    a(f's_mov_b32 exec_lo, 0\nv_mov_b64 v[{p+6}:{p+7}], 0\ns_mov_b32 exec_lo, -1')
    for c in range(2): a(f'buffer_store_dwordx4 {vr(p+4*c,4)}, v1, {WSR}, s{78+tt} offen offset:{1024*c} sc1')
a('s_waitcnt vmcnt(0)')
setflag(82, 2, 3)
stamp(6)
a.label('L_G_common')
a(f's_cmp_ge_u32 s{sI}, 28\ns_cbranch_scc1 L_fin')
if OPT['stop'] <= 2: a('s_branch L_fin')
a(f'''
v_lshrrev_b32 v10, 3, v0
v_and_b32 v11, 7, v0
v_bfe_u32 v12, v0, 4, 1
v_lshlrev_b32 v12, 2, v12
v_xor_b32 v11, v11, v12
v_lshlrev_b32 v11, 4, v11
v_mul_u32_u24 v10, 896, v10
v_add_u32 v4, v10, v11
v_add_u32 v5, 6144, v4
v_add_u32 v6, 12288, v4
v_add_u32 v7, 18432, v4
s_lshl_b32 s78, s{sU}, 7
''')
for (srdw, img, n) in ((SWOB, L_WOB, 14), (SWOA, L_WOA, 10)):
    a(f's_mul_i32 s76, s{sWQ}, {n*8*896}\ns_add_u32 s76, s76, s78\ns_mul_i32 s77, s{sWQ}, {n*1024}')
    for g in range(0, n, 4):
        a(f's_add_u32 m0, s77, {img + g*1024}\ns_nop 0')
        for i in range(min(4, n - g)):
            a(f'buffer_load_dwordx4 v{4+i}, s[{srdw}:{srdw+3}], s76 offen offset:{1024*i} lds')
        if g + 4 < n: a(f's_add_u32 s76, s76, {32*896}')
p3_setup(1, L_WOB, L_GX)
poll(vPF, SWS, 0xff, 12, sleep=8)
p3_loads()
a('s_waitcnt vmcnt(0)')
stamp(7)
a('s_barrier')
a('s_branch L_p3')
a.label('L_code_end')

bad = check_hazards(a.lines)
for b in bad: print('HAZARD', b, file=sys.stderr)

hdr = open('cdna_kernels/' + NAME + '.s.ref').read().split('; @launch')[0]
out = hdr + '; @launch grid=(256,1,1) block=(512,1,1) lds=163840\n'
out += f'''.amdgcn_target "amdgcn-amd-amdhsa--gfx950"
.text
.globl {NAME}_kernel
.p2align 8
.type {NAME}_kernel,@function
''' + a.text() + f'''.section .rodata,"a"
.p2align 6
.amdhsa_kernel {NAME}_kernel
  .amdhsa_next_free_vgpr 256
  .amdhsa_next_free_sgpr 102
  .amdhsa_accum_offset 256
  .amdhsa_group_segment_fixed_size 0
  .amdhsa_kernarg_size 80
  .amdhsa_user_sgpr_count 2
  .amdhsa_user_sgpr_kernarg_segment_ptr 1
  .amdhsa_system_sgpr_workgroup_id_x 1
.end_amdhsa_kernel
'''
open(sys.argv[1], 'w').write(out)
```

```python
import sys, math, struct
from asmlib import *

NAME = 'concat_heads__softmax_full_mha__linear_kernel_hedgehog__prompt'
OPT = dict(pwlo=0, pwhi=256, wopf=0, p1only=0, nomfma=0, nolds=0, stamp=0, probe=-1, probeT=1, force_fb=0, rot=1, look0=4, look=10, nb=5, gidle=0, outsc=0, gsleep=8, psleep=1, prio=1, pace=1, nfill=5)
for a in sys.argv[2:]:
    k, v = a.split('='); assert k in OPT, k; OPT[k] = int(v)

MF = 'v_mfma_f32_32x32x16_bf16'
SM = 'v_smfmac_f32_32x32x32_bf16'
def f2u(x): return struct.unpack('<I', struct.pack('<f', x))[0]
LOG2E = math.log2(math.e)
QSCALE = f2u(28 ** -0.5 * LOG2E)
BIAS = 16.0

FA, FKS, FOB, FKV, FOA = 0x0, 0xC000, 0x10000, 0x20000, 0x30000
KVS = 0x90000
STAMP = 0xA0000
QF, KVF, OF, PART = 0x100000, 0x400000, 0x800000, 0xC00000
WS_SIZE = 0x1000000
STG = 40960
def stg_base(s): return ((s + 1) % 4) * STG
L_PHI, L_PK, L_VX = 0, 8192, 40960
L_WOB, L_GX, L_WOA, L_RED = 0, 57344, 73728, 114688
L_QX = L_WOA + 32768
L_TX = L_RED + 16384

SX, SW, SWS, SDBG, SOUT, SWOA, SWOB, SPHI = 24, 28, 32, 36, 40, 44, 48, 52
sW, sWQ, sXC, sI, sROLE, sTB, sGRP, sH, sQB, sU, sTB64 = range(56, 67)
sT = 67
sPO, sPL = 84, 85
sSPIN = 90
WSR = f's[{SWS}:{SWS+3}]'

a = Asm()
class Ctr:
    def __init__(self, name): self.name = name; self.q = []
    def add(self, tag, n=1): self.q += [tag] * n
    def need(self, *tags):
        idx = max([i for i, t in enumerate(self.q) if t in tags], default=-1)
        if idx < 0: return None
        n = len(self.q) - 1 - idx
        self.q = self.q[idx+1:]
        return n
    def wait(self, *tags):
        n = self.need(*tags)
        if n is not None: a(f's_waitcnt {self.name}({n})')
def srd(base, lo, size):
    a(f's_mov_b32 s{base}, s{lo}\ns_mov_b32 s{base+1}, s{lo+1}\ns_mov_b32 s{base+2}, {size}\ns_mov_b32 s{base+3}, 0x20000')
def stamp(idx):
    if not OPT['stamp']: return
    a(f's_memrealtime s[88:89]\ns_waitcnt lgkmcnt(0)\nv_writelane_b32 v254, s88, {idx}')
def poll(voff, srdb, mask, vtmp, sleep=1):
    L = a.newlabel('L_poll'); D = a.newlabel('L_polld')
    a(f's_mov_b64 exec, {mask}\ns_mov_b32 s{sSPIN}, 0x40000')
    a.label(L)
    a(f'buffer_load_dword v{vtmp}, v{voff}, s[{srdb}:{srdb+3}], 0 offen sc1\ns_waitcnt vmcnt(0)')
    a(f'v_cmp_ne_u32 vcc, 1, v{vtmp}\ns_cbranch_vccz {D}')
    if sleep: a(f's_sleep {sleep}')
    a(f's_sub_u32 s{sSPIN}, s{sSPIN}, 1\ns_cbranch_scc0 {L}')
    a.label(D)
    a('s_mov_b64 exec, -1')
def setflag(soff, v1, v2):
    a(f's_mov_b64 exec, 1\nv_mov_b32 v{v1}, 1\nv_mov_b32 v{v2}, 0')
    a(f'buffer_store_dword v{v1}, v{v2}, {WSR}, s{soff} offen sc1\ns_mov_b64 exec, -1')
def job_ids():
    a(f'''
    s_mul_i32 s{sT}, s{sI}, 37
    s_lshr_b32 s{sT}, s{sT}, 8
    s_mul_i32 s{sT+1}, s{sT}, 7
    s_sub_u32 s{sU}, s{sI}, s{sT+1}
    s_lshl_b32 s{sTB64}, s{sXC}, 2
    s_add_u32 s{sTB64}, s{sTB64}, s{sT}
    ''')

a.label(NAME + '_kernel')
if OPT['stamp']: a('s_memrealtime s[86:87]')
a(f'''
s_cmp_ge_u32 s2, 256
s_cbranch_scc1 L_end
s_load_dwordx16 s[4:19], s[0:1], 0
s_load_dwordx4 s[20:23], s[0:1], 64
v_lshrrev_b32 v1, 6, v0
v_and_b32 v0, 63, v0
v_readfirstlane_b32 s{sW}, v1
s_and_b32 s{sXC}, s2, 7
s_lshr_b32 s{sI}, s2, 3
s_and_b32 s{sROLE}, s{sI}, 1
s_lshr_b32 s{sQB}, s{sI}, 1
s_lshr_b32 s{sT}, s{sXC}, 1
s_and_b32 s{sTB}, s{sQB}, 3
s_lshl2_add_u32 s{sTB}, s{sT}, s{sTB}
s_and_b32 s{sT}, s{sXC}, 1
s_lshr_b32 s{sGRP}, s{sQB}, 2
s_lshl2_add_u32 s{sGRP}, s{sT}, s{sGRP}
s_and_b32 s{sWQ}, s{sW}, 3
v_lshlrev_b32 v1, 4, v0
''')
if OPT['stamp']: a('v_mov_b32 v254, 0')
a(f's_cmp_lt_u32 s{sW}, 4\ns_cbranch_scc1 L_G')

vX, vWl, vWO = 4, 8, 15
sXo, sWo, sMX, sMW, sRS = 70, 71, 74, 75, 76
a(f'''
v_lshrrev_b32 v10, 3, v0
v_and_b32 v11, 7, v0
v_lshrrev_b32 v12, 4, v0
v_xor_b32 v13, v11, v12
v_mul_u32_u24 v14, 896, v10
v_lshl_add_u32 v{vX}, v13, 4, v14
v_xor_b32 v{vX+1}, 64, v{vX}
v_add_u32 v{vX+1}, 6144, v{vX+1}
v_add_u32 v{vX+2}, 12288, v{vX}
v_add_u32 v{vX+3}, 12288, v{vX+1}
s_lshl2_add_u32 s{sXo}, s{sTB}, s{sWQ}
s_mul_i32 s{sXo}, s{sXo}, 28672
s_lshl_b32 s{sMX}, s{sWQ}, 12
s_mov_b32 s{SX+2}, 1835008
s_mov_b32 s{SX+3}, 0x20000
''')
if OPT['rot']:
    a(f's_lshl_b32 s{sRS}, s{sXC}, 2\ns_lshr_b32 s77, {hex(0x53164210)}, s{sRS}\ns_and_b32 s{sRS}, s77, 15\ns_lshl_b32 s77, s{sRS}, 7\ns_add_u32 s{sXo}, s{sXo}, s77')
a(f'''
v_and_b32 v12, 1, v12
v_lshlrev_b32 v12, 2, v12
v_xor_b32 v13, v11, v12
v_lshl_add_u32 v{vWO}, v13, 4, v14
v_min_u32 v13, 6, v13
v_mul_u32_u24 v14, 2688, v10
v_lshl_add_u32 v{vWl}, v13, 4, v14
v_add_u32 v{vWl+1}, 20480, v{vWl}
s_cmp_eq_u32 s{sROLE}, 0
s_waitcnt lgkmcnt(0)
s_cselect_b64 s[{SX}:{SX+1}], s[4:5], s[10:11]
s_cselect_b64 s[{SW}:{SW+1}], s[6:7], s[12:13]
s_cselect_b32 s{sT}, 3, 1
s_cselect_b32 s{sT+1}, 1, 8
''')
if OPT['stamp']: a('v_writelane_b32 v254, s86, 0')
stamp(11)
def w_setup():
    a(f'''
    s_mov_b32 s{SW+2}, 1204224
    s_mov_b32 s{SW+3}, 0x20000
    s_mulk_i32 s{sT}, 112
    s_mulk_i32 s{sT+1}, 112
    s_mul_i32 s{sWo}, s{sGRP}, s{sT}
    ''')
    if OPT['rot']: a(f's_lshl2_add_u32 s{sT}, s{sRS}, s{sWQ}\ns_mul_i32 s{sT}, s{sT}, {16*2688}')
    else: a(f's_mul_i32 s{sT}, s{sWQ}, {16*2688}')
    a(f'''
    s_add_u32 s{sWo}, s{sWo}, s{sT}
    s_add_u32 s{sWo+1}, s{sWo}, s{sT+1}
    s_add_u32 s{sWo+2}, s{sWo+1}, s{sT+1}
    s_lshl_b32 s{sMW}, s{sWQ}, 11
    ''')
def p1_ops(s):
    b = stg_base(s)
    ops = []
    for i in range(4):
        ops.append((f's_add_u32 m0, s{sMX}, {b}\ns_nop 0' if i == 0 else '', f'buffer_load_dwordx4 v{vX+i}, s[{SX}:{SX+3}], s{sXo} offen offset:{1024*i} lds'))
    for j in range(3):
        ops.append((f's_add_u32 m0, s{sMW}, {b + 16384 + j*8192}\ns_nop 0', f'buffer_load_dwordx4 v{vWl}, s[{SW}:{SW+3}], s{sWo+j} offen lds'))
        ops.append(('', f'buffer_load_dwordx4 v{vWl+1}, s[{SW}:{SW+3}], s{sWo+j} offen offset:1024 lds'))
    return ops
def p1_adv():
    if OPT['rot']:
        a(f's_add_u32 s{sRS}, s{sRS}, 1\ns_cmp_eq_u32 s{sRS}, 7\ns_cselect_b32 s77, -6, 1\ns_mul_i32 s78, s77, {64*2688}\ns_lshl_b32 s77, s77, 7')
        for j in range(3): a(f's_add_u32 s{sWo+j}, s{sWo+j}, s78')
        a(f's_add_u32 s{sXo}, s{sXo}, s77')
    else:
        for j in range(3): a(f's_add_u32 s{sWo+j}, s{sWo+j}, {64*2688}')
        a(f's_add_u32 s{sXo}, s{sXo}, 128')
p1_pos = [0]
def p1_issue_to(n):
    n = min(n, 70)
    while p1_pos[0] < n:
        k = p1_pos[0]
        if k == 4: w_setup()
        st, ld = p1_ops(k // 10)[k % 10]
        a(st); a(ld)
        if k % 10 == 9 and k < 69: p1_adv()
        p1_pos[0] += 1

NB = OPT['nb']; NS = 8 - NB
vO, vQ, vKV, vS = 16, 80, 112, 112 + 16 * NB
vIDX, vFL = 2, 3
vPA, vPX, vPO, vPF = 240, 244, 246, 247
vOF, vAC, vWF = 112, 176, 208
def p3_setup(br, img, exch):
    a(f'''
    s_and_b32 s78, s{sWQ}, 1
    s_lshr_b32 s79, s{sWQ}, 1
    v_bfe_u32 v12, v0, 2, 2
    v_and_b32 v13, 3, v0
    v_lshlrev_b32 v13, 3, v13
    v_bfe_u32 v14, v0, 4, 1
    v_lshl_or_b32 v13, v14, 5, v13
    v_lshrrev_b32 v14, 1, v12
    v_xor_b32 v14, s79, v14
    v_lshl_or_b32 v13, v14, 6, v13
    v_lshl_or_b32 v13, v12, 7, v13
    s_mul_i32 s80, s79, {224*128}
    s_add_u32 s80, s80, {img}
    v_add_u32 v{vPA+2}, s80, v13
    v_xor_b32 v13, 64, v13
    v_add_u32 v{vPA+3}, s80, v13
    v_lshrrev_b32 v14, 5, v0
    v_lshlrev_b32 v12, 9, v14
    v_add_u32 v{vPA}, v{vPA+2}, v12
    v_add_u32 v{vPA+1}, v{vPA+3}, v12
    s_lshl_b32 s80, s{sWQ}, 12
    s_add_u32 s80, s80, {exch}
    v_add_u32 v{vPX}, s80, v1
    s_xor_b32 s80, s{sWQ}, 2
    s_lshl_b32 s80, s80, 12
    s_add_u32 s80, s80, {exch}
    v_add_u32 v{vPX+1}, s80, v1
    v_and_b32 v12, 31, v0
    ''')
    if br == 0:
        a('''
        v_and_b32 v13, 19, v12
        v_bfe_u32 v10, v12, 2, 1
        v_lshl_or_b32 v13, v10, 3, v13
        v_bfe_u32 v10, v12, 3, 1
        v_lshl_or_b32 v12, v10, 2, v13
        ''')
    a(f'''
    v_mul_u32_u24 v12, 1792, v12
    v_lshl_add_u32 v{vPO}, v14, 4, v12
    s_lshl1_add_u32 s80, s{sTB64}, s78
    s_mul_i32 s{sPO}, s80, {32*1792}
    s_lshl_b32 s82, s{sU}, 7
    s_add_u32 s{sPO}, s{sPO}, s82
    s_lshl_b32 s82, s79, 6
    s_add_u32 s{sPO}, s{sPO}, s82
    s_add_u32 s{sPO}, s{sPO}, {br*896}
    s_lshl1_add_u32 s83, s80, s79
    s_lshl_b32 s{sPL}, s83, 14
    s_add_u32 s{sPL}, s{sPL}, {OF + br*0x200000}
    ''')
    if br == 1: a(f's_lshl1_add_u32 s83, s{sTB64}, s79')
    a(f's_lshl_b32 s83, s83, 10\ns_add_u32 s83, s83, {FOB if br else FOA}')
    a(f'v_lshlrev_b32 v{vPF}, 7, v0\nv_add_u32 v{vPF}, s83, v{vPF}')
def p3_loads():
    for n in range(16):
        a(f'buffer_load_dwordx4 {vr(vOF+4*n,4)}, v1, {WSR}, s{sPL} offen offset:{1024*(n%4)} sc1')
        if n % 4 == 3 and n < 15: a(f's_add_u32 s{sPL}, s{sPL}, 4096')
def t_setup(s):
    if s == 0:
        srd(SWS, 22, WS_SIZE); srd(SDBG, 20, 256)
        a(f'''
        s_cmp_ge_u32 s2, 16
        s_cbranch_scc1 L_noclear
        s_lshl2_add_u32 s79, s2, s{sWQ}
        s_lshl_b32 s80, s79, 13
        v_lshlrev_b32 v10, 7, v0
        v_mov_b32 v11, 0
        buffer_store_dword v11, v10, {WSR}, s80 offen sc1
        L_noclear:
        ''')
    if s == 1:
        srd(SOUT, 18, 3670016); srd(SWOA, 8, 401408); srd(SWOB, 16, 401408); srd(SPHI, 14, 25088)
        job_ids()
        a(f'''
        s_lshl1_add_u32 s{sH}, s{sXC}, s{sROLE}
        v_mov_b32 v{vIDX}, 0xdddddddd
        s_lshl_b32 s{sT}, s{sXC}, 4
        s_lshl2_add_u32 s80, s{sWQ}, s{sT}
        s_add_u32 s{sT}, s{sT}, s{sQB}
        v_and_b32 v10, 3, v0
        v_lshrrev_b32 v11, 2, v0
        v_add_u32 v11, 1, v11
        v_lshl_add_u32 v10, v11, 7, v10
        v_add_u32 v{vFL}, s80, v10
        s_mov_b64 exec, 0x100
        v_mov_b32 v{vFL}, s{sT}
        s_mov_b64 exec, -1
        v_lshlrev_b32 v{vFL}, 7, v{vFL}
        ''')
    if s == 2:
        a(f'''
        s_cmp_ge_u32 s2, 16
        s_cbranch_scc1 L_nomark
        s_lshl2_add_u32 s79, s2, s{sWQ}
        s_lshl_b32 s79, s79, 2
        v_mov_b32 v10, 1
        v_mov_b32 v11, 0
        s_mov_b64 exec, 1
        buffer_store_dword v10, v11, s[{SDBG}:{SDBG+3}], s79 offen sc1
        s_mov_b64 exec, -1
        L_nomark:
        ''')
        for i in range(0, 64, 2): a(f'v_mov_b64 v[{vO+i}:{vO+i+1}], 0')
    if s == 3:
        p3_setup(0, L_WOA, L_TX)
        a('v_lshlrev_b32 v11, 2, v0')
    if s == 6:
        a(f'''
        s_mul_i32 s79, s{sGRP}, 3136
        s_lshl_b32 s80, s{sWQ}, 10
        s_add_u32 s79, s79, s80
        s_add_u32 m0, s80, {L_PHI}
        s_nop 0
        buffer_load_dwordx4 v1, s[{SPHI}:{SPHI+3}], s79 offen lds
        buffer_load_dword v248, v11, s[{SDBG}:{SDBG+3}], 0 offen sc1
        ''')
for s in range(7):
    if s == 0: p1_issue_to(10); stamp(12); t_setup(0)
    if s == 2: t_setup(2)
    p1_issue_to(10 * (s + 1) + (OPT['look0'] if s == 0 else OPT['look']))
    if s in (1, 3, 6): t_setup(s)
    if s == 0: stamp(13)
    a(f's_waitcnt vmcnt({p1_pos[0] - 10*(s+1)})')
    if s == 0: stamp(14)
    if s == 4: stamp(15)
    if s == 6:
        a('v_cmp_ne_u32 vcc, 1, v248\ns_cbranch_vccz L_dbgok')
        poll(11, SDBG, -1, 12)
        a.label('L_dbgok')
    a('s_barrier')
    if s == 0: stamp(1)
stamp(2)
if OPT['p1only']: a('s_branch L_fin')
sKV, sQo = 70, 71
vRW, vRR, vQX = 4, 7, 8
a(f'''
s_cmp_eq_u32 s{sROLE}, 0
{'s_cbranch_scc1' if OPT['wopf'] else 's_branch'} L_nopf
s_lshl2_add_u32 s79, s{sQB}, s{sWQ}
s_mulk_i32 s79, {49*128}
v_lshlrev_b32 v10, 7, v0
s_mov_b32 exec_hi, 0x1ffff
buffer_load_dword v255, v10, s[{SWOB}:{SWOB+3}], s79 offen
buffer_load_dword v255, v10, s[{SWOA}:{SWOA+3}], s79 offen
s_mov_b32 exec_hi, -1
L_nopf:
s_lshl2_add_u32 s{sKV}, s{sH}, s{sWQ}
s_lshl_b32 s{sKV}, s{sKV}, 16
s_add_u32 s{sKV}, s{sKV}, {KVF}
s_lshl4_add_u32 s{sQo}, s{sH}, s{sQB}
s_lshl2_add_u32 s{sQo}, s{sQo}, s{sWQ}
s_lshl_b32 s{sQo}, s{sQo}, 11
s_add_u32 s{sQo}, s{sQo}, {QF}
''')
for j in range(4):
    a(f's_add_u32 s{sT+2}, s{sWQ}, {j+1}\ns_and_b32 s{sT+2}, s{sT+2}, 3')
    a(f's_lshl_b32 s76, s{sT+2}, 12\ns_add_u32 s76, s76, {L_RED + (j*16384 if j < 3 else 0)}\nv_add_u32 v{vRW+j}, s76, v1')
    a(f's_lshl_b32 s76, s{sT+2}, 11\ns_add_u32 s76, s76, {L_QX}\nv_add_u32 v{vQX+j}, s76, v1')
a(f's_mov_b32 s77, {hex(f2u(-BIAS))}')
a('s_barrier')
poll(vFL, SWS, 0x1ff, 12, sleep=OPT['psleep'])
stamp(3)
kb = lambda kt: vKV + 16 * (kt % NB)
SB = lambda u: vS + 16 * (u % NS)
Q3 = vQ + 24
for c in range(2): a(f'buffer_load_dwordx4 {vr(Q3+4*c,4)}, v1, {WSR}, s{sQo} offen offset:{1024*c} sc1')
def kv_load(kt, c): a(f'buffer_load_dwordx4 {vr(kb(kt)+4*c,4)}, v1, {WSR}, s{sKV} offen offset:{1024*c} sc1')
for kt in range(2):
    for c in range(4): kv_load(kt, c)
    a(f's_add_u32 s{sKV}, s{sKV}, 4096')
a('s_waitcnt vmcnt(6)')
a(f'{MF} {vr(vS,16)}, {vr(kb(0),4)}, {vr(Q3,4)}, 0')
a(f'{MF} {vr(vS,16)}, {vr(kb(0)+4,4)}, {vr(Q3+4,4)}, {vr(vS,16)}')
a(f'ds_write_b128 v{vQX+3}, {vr(Q3,4)}')
for kt in range(2, NB - 1):
    for c in range(4): kv_load(kt, c)
    a(f's_add_u32 s{sKV}, s{sKV}, 4096')
a(f's_nop {10 - 5*(NB-3)}')
a(f'v_max3_f32 v12, v{vS}, v{vS+1}, v{vS+2}\nv_max3_f32 v13, v{vS+3}, v{vS+4}, v{vS+5}')
for i in range(6, 14, 4): a(f'v_max3_f32 v12, v12, v{vS+i}, v{vS+i+1}\nv_max3_f32 v13, v13, v{vS+i+2}, v{vS+i+3}')
a(f'''
v_max3_f32 v12, v12, v{vS+14}, v{vS+15}
v_max_f32 v12, v12, v13
v_mov_b32 v13, v12
s_nop 1
v_permlane32_swap_b32 v12, v13
s_mov_b32 exec_lo, 0
v_max_f32 v12, v12, v13
v_cvt_pk_bf16_f32 v{Q3+6}, -v12, s77
s_mov_b32 exec_lo, -1
ds_write_b128 v{vQX+3}, {vr(Q3+4,4)} offset:1024
s_waitcnt lgkmcnt(0)
''')
stamp(10)
a('s_barrier')
for j in range(3):
    for c in range(2): a(f'ds_read_b128 {vr(vQ+8*j+4*c,4)}, v{vQX+j} offset:{1024*c}')
for u in range(2):
    a(f's_waitcnt lgkmcnt({4-2*u})')
    a(f'{MF} {vr(SB(u),16)}, {vr(kb(0),4)}, {vr(vQ+8*u,4)}, 0')
    a(f'{MF} {vr(SB(u),16)}, {vr(kb(0)+4,4)}, {vr(vQ+8*u+4,4)}, {vr(SB(u),16)}')
a(f's_waitcnt vmcnt({4*(NB-2)}) lgkmcnt(0)')
a('s_nop 7')
stamp(4)
NKT = 16; NU = 4 * NKT
def E(u, lo, hi):
    for i in range(lo, hi): a(f'v_exp_f32 v{SB(u)+i}, v{SB(u)+i}')
def redw(j, q):
    a(f'ds_write_b128 v{vRW+j}, {vr(vO+16*j+4*q,4)} offset:{1024*q}')
for u in range(NU):
    kt, j = u >> 2, u & 3
    u2 = u + 2
    E(u, 0, 2)
    if u > 0: a(f'{SM} {vr(vO+16*((u-1)&3),16)}, {vr(kb((u-1)>>2)+12,4)}, {vr(SB(u-1)+8,8)}, v{vIDX}')
    if kt + NB - 1 < NKT: kv_load(kt + NB - 1, j)
    if u >= NU - 2: redw(u - (NU - 2), 0)
    E(u, 2, 6)
    if u2 < NU: a(f'{MF} {vr(SB(u2),16)}, {vr(kb(u2>>2),4)}, {vr(vQ+8*(u2&3),4)}, 0')
    if j == 3 and kt + NB < NKT: a(f's_add_u32 s{sKV}, s{sKV}, 4096')
    if u >= NU - 2: redw(u - (NU - 2), 1)
    E(u, 6, 10)
    a(f'{SM} {vr(vO+16*j,16)}, {vr(kb(kt)+8,4)}, {vr(SB(u),8)}, v{vIDX}')
    if u >= NU - 2: redw(u - (NU - 2), 2)
    E(u, 10, 14)
    if u2 < NU: a(f'{MF} {vr(SB(u2),16)}, {vr(kb(u2>>2)+4,4)}, {vr(vQ+8*(u2&3)+4,4)}, {vr(SB(u2),16)}')
    if j == 1 and kt + 1 < NKT:
        n = sum(4 for k2 in range(kt+2, kt+NB-1) if k2 < NKT) + (2 if kt + NB - 1 < NKT else 0)
        a(f's_waitcnt vmcnt({n})')
    if u >= NU - 2: redw(u - (NU - 2), 3)
    E(u, 14, 16)
redw(2, 0); redw(2, 1)
a(f'{SM} {vr(vO+48,16)}, {vr(kb(NKT-1)+12,4)}, {vr(SB(NU-1)+8,8)}, v{vIDX}')
redw(2, 2); redw(2, 3)
sOo, sFo = 70, 71
a(f'''
s_lshl2_add_u32 s{sT}, s{sQB}, s{sWQ}
s_lshl4_add_u32 s{sT}, s{sT}, s{sH}
s_lshl_b32 s{sOo}, s{sT}, 11
s_add_u32 s{sOo}, s{sOo}, {OF}
s_lshl_b32 s{sFo}, s{sT}, 7
s_add_u32 s{sFo}, s{sFo}, {FOA}
s_mov_b32 s72, {hex(f2u(2.0**120))}
s_mov_b32 s73, {hex(f2u(2.0**-64))}
s_waitcnt lgkmcnt(0)
''')
stamp(5)
if OPT['prio']: a('s_setprio 2')
a('s_barrier')
stamp(11)
vA = vO + 48
vRD = 128 if NB == 5 else 112
QO = (3, 0, 1, 2)
for q in QO:
    for j in range(3): a(f'ds_read_b128 {vr(vRD+16*j+4*q,4)}, v{vRR} offset:{j*16384+q*1024}')
def rowsum():
    a(f'''
    v_mov_b32 v8, v{vA+12}
    v_mov_b32 v9, v{vA+12}
    s_mov_b32 exec_lo, 0
    v_mov_b64 v[{vA+12}:{vA+13}], 0
    v_mov_b64 v[{vA+14}:{vA+15}], 0
    s_mov_b32 exec_lo, -1
    v_permlane32_swap_b32 v8, v9
    v_rcp_f32 v10, v9
    ''')
for n, q in enumerate(QO):
    a(f's_waitcnt lgkmcnt({10-3*n})')
    for e in range(4): a(f'v_add_f32 v{vA+4*q+e}, v{vA+4*q+e}, v{vRD+4*q+e}')
    for e in range(4): a(f'v_add_f32 v{vA+4*q+e}, v{vA+4*q+e}, v{vRD+16+4*q+e}')
    a(f's_waitcnt lgkmcnt({9-3*n})')
    for e in range(4): a(f'v_add_f32 v{vA+4*q+e}, v{vA+4*q+e}, v{vRD+32+4*q+e}')
    if n == 0: rowsum()
a(f'v_maximum3_f32 v8, |v{vA}|, |v{vA+1}|, v9')
for i in range(2, 16, 2): a(f'v_maximum3_f32 v8, |v{vA+i}|, |v{vA+i+1}|, v8')
a('v_cmp_nlt_f32 vcc, v8, s72\nv_cmp_ngt_f32 s[76:77], v9, s73')
def scale_pack():
    for i in range(16): a(f'v_mul_f32 v{vA+i}, v{vA+i}, v10')
    for i in range(8): a(f'v_cvt_pk_bf16_f32 v{vS+i}, v{vA+2*i}, v{vA+2*i+1}')
scale_pack()
a('s_or_b64 vcc, vcc, s[76:77]')
if OPT['force_fb']: a('s_mov_b64 vcc, 1')
a('s_cbranch_vccnz L_fallback')
a.label('L_ostore')
stamp(12)
for c in range(2): a(f'buffer_store_dwordx4 {vr(vS+4*c,4)}, v1, {WSR}, s{sOo} offen offset:{1024*c} sc1')
a(f'''
v_add_u32 v4, 6144, v{vWO}
v_add_u32 v5, 12288, v{vWO}
v_add_u32 v6, 18432, v{vWO}
s_lshl_b32 s{sT+2}, s{sU}, 7
s_mul_i32 s{sT}, s{sWQ}, {16*896}
s_add_u32 s{sT}, s{sT}, s{sT+2}
s_add_u32 s{sT}, s{sT}, {256*896}
s_lshl_b32 s{sT+1}, s{sWQ}, 11
s_add_u32 m0, s{sT+1}, {L_QX}
s_mul_i32 s76, s{sWQ}, {32*896}
buffer_load_dwordx4 v{vWO}, s[{SWOA}:{SWOA+3}], s{sT} offen lds
buffer_load_dwordx4 v4, s[{SWOA}:{SWOA+3}], s{sT} offen offset:1024 lds
s_add_u32 s76, s76, s{sT+2}
s_add_u32 s76, s76, {320*896}
s_lshl_b32 s{sT+1}, s{sWQ}, 12
s_add_u32 m0, s{sT+1}, {L_RED}
s_nop 0
buffer_load_dwordx4 v{vWO}, s[{SWOA}:{SWOA+3}], s76 offen lds
buffer_load_dwordx4 v4, s[{SWOA}:{SWOA+3}], s76 offen offset:1024 lds
buffer_load_dwordx4 v5, s[{SWOA}:{SWOA+3}], s76 offen offset:2048 lds
buffer_load_dwordx4 v6, s[{SWOA}:{SWOA+3}], s76 offen offset:3072 lds
s_waitcnt vmcnt(6)
''')
setflag(sFo, 12, 13)
stamp(6)
a(f's_cmp_ge_u32 s{sI}, 28\ns_cbranch_scc1 L_fin')
poll(vPF, SWS, 0xff, 12, sleep=OPT['psleep'])
stamp(7)
p3_loads()
a('s_barrier')
a.label('L_p3')
def wo_reads(n):
    hl, c = n >> 1, n & 1
    for aa in range(2):
        for jj in range(2):
            ad = vPA + aa + (2 if (c == 1 and jj == 1) else 0)
            a(f'ds_read_b64_tr_b16 {vr(vWF+8*(n&3)+4*aa+2*jj,2)}, v{ad} offset:{(28*hl+16*c+8*jj)*128}')
wo_reads(0); wo_reads(1)
for n in range(16):
    if n < 14: wo_reads(n + 2)
    a(f's_waitcnt vmcnt({15-n}) lgkmcnt({4*min(2, 15-n)})')
    for aa in (1, 0):
        a(f'{MF} {vr(vAC+16*aa,16)}, {vr(vWF+8*(n&3)+4*aa,4)}, {vr(vOF+4*n,4)}, {vr(vAC+16*aa,16) if n else 0}')
a('s_nop 10')
for q in range(4): a(f'ds_write_b128 v{vPX}, {vr(vAC+16+4*q,4)} offset:{1024*q}')
a('s_waitcnt lgkmcnt(0)\ns_barrier')
for q in range(4): a(f'ds_read_b128 {vr(vAC+16+4*q,4)}, v{vPX+1} offset:{1024*q}')
osc = ' sc1' if OPT['outsc'] else ''
for h2 in range(2):
    for q in (2*h2, 2*h2+1):
        a(f's_waitcnt lgkmcnt({3-q})')
        for e in range(4): a(f'v_add_f32 v{vAC+4*q+e}, v{vAC+4*q+e}, v{vAC+16+4*q+e}')
    for i in range(4*h2, 4*h2+4): a(f'v_cvt_pk_bf16_f32 v{vWF+i}, v{vAC+2*i}, v{vAC+2*i+1}')
    a(f'''
    s_nop 0
    v_permlane32_swap_b32 v{vWF+4*h2}, v{vWF+4*h2+2}
    v_permlane32_swap_b32 v{vWF+4*h2+1}, v{vWF+4*h2+3}
    buffer_store_dwordx4 {vr(vWF+4*h2,4)}, v{vPO}, s[{SOUT}:{SOUT+3}], s{sPO} offen offset:{32*h2}{osc}
    ''')
a.label('L_fin')
if OPT['stamp']:
    stamp(8)
    a('s_waitcnt vmcnt(0)')
    stamp(9)
    a(f's_lshl3_add_u32 s88, s2, s{sW}\ns_lshl_b32 s88, s88, 6\ns_add_u32 s88, s88, {STAMP}')
    a(f's_mov_b64 exec, 0xffff\nv_lshlrev_b32 v3, 2, v0\nbuffer_store_dword v254, v3, {WSR}, s88 offen\ns_mov_b64 exec, -1')
    if OPT['probe'] >= 0:
        a(f's_cmp_{"lt" if OPT["probeT"] else "ge"}_u32 s{sW}, 4\ns_cbranch_scc1 L_end')
        a(f's_cmp_lt_u32 s2, {OPT["pwlo"]}\ns_cbranch_scc1 L_end\ns_cmp_ge_u32 s2, {OPT["pwhi"]}\ns_cbranch_scc1 L_end')
        a(f'v_readlane_b32 s80, v254, {OPT["probe"]}\ns_nop 3\ns_cmp_eq_u32 s80, 0\ns_cbranch_scc1 L_end\ns_add_u32 s80, s80, 6000')
        a('L_probe:\ns_sleep 2\ns_memrealtime s[88:89]\ns_waitcnt lgkmcnt(0)\ns_sub_u32 s81, s88, s80\ns_cmp_lt_i32 s81, 0\ns_cbranch_scc1 L_probe')
a.label('L_end')
a('s_endpgm')

a.label('L_G')
vXR, vXR2, vWR, vWR2 = 4, 8, 12, 13
vACC, vFR, vXL, vWL, vPK, vPH = 16, 112, 152, 184, 200, 232
sTH, sSG, sHB = 70, 71, 72
a(f'''
s_lshr_b32 s{sTH}, s{sWQ}, 1
s_and_b32 s{sSG}, s{sWQ}, 1
s_getpc_b64 s[76:77]
L_pc:
s_sub_u32 s76, s76, L_pc-{NAME}_kernel
s_subb_u32 s77, s77, 0
s_lshl2_add_u32 s{sT}, s{sI}, s{sWQ}
s_mulk_i32 s{sT}, 384
v_lshlrev_b32 v2, 7, v0
v_add_u32 v2, s{sT}, v2
v_min_u32 v2, L_code_end-{NAME}_kernel-4, v2
s_mov_b64 exec, 7
global_load_dword v255, v2, s[76:77]
s_mov_b64 exec, -1
v_and_b32 v14, 31, v0
v_lshrrev_b32 v15, 5, v0
v_bfe_u32 v2, v14, 1, 3
v_xor_b32 v2, v2, v15
v_lshlrev_b32 v2, 4, v2
v_lshl_or_b32 v2, v14, 7, v2
s_lshl_b32 s{sT}, s{sTH}, 13
v_add_u32 v{vXR}, s{sT}, v2
v_xor_b32 v{vXR+1}, 32, v{vXR}
v_xor_b32 v{vXR+2}, 64, v{vXR}
v_xor_b32 v{vXR+3}, 96, v{vXR}
v_add_u32 v{vXR2}, {2*STG}, v{vXR}
v_add_u32 v{vXR2+1}, {2*STG}, v{vXR+1}
v_add_u32 v{vXR2+2}, {2*STG}, v{vXR+2}
v_add_u32 v{vXR2+3}, {2*STG}, v{vXR+3}
v_bfe_u32 v2, v0, 2, 2
v_and_b32 v{vWR}, 3, v0
v_lshlrev_b32 v{vWR}, 3, v{vWR}
v_bfe_u32 v{vWR2}, v0, 4, 1
v_lshl_or_b32 v3, v{vWR2}, 5, v{vWR}
s_mul_i32 s{sT}, s{sSG}, 56
v_add_u32 v{vWR}, s{sT}, v3
v_lshrrev_b32 v{vWR2}, 1, v2
v_lshlrev_b32 v{vWR2}, 6, v{vWR2}
v_xor_b32 v{vWR}, v{vWR}, v{vWR2}
v_lshl_add_u32 v14, v15, 3, v2
v_lshl_add_u32 v{vWR}, v14, 7, v{vWR}
v_add_u32 v{vWR}, 16384, v{vWR}
v_add_u32 v{vWR2}, {2*STG}, v{vWR}
s_waitcnt lgkmcnt(0)
''')
if OPT['stamp']: a('v_writelane_b32 v254, s86, 0')
stamp(12)
srd(SWS, 22, WS_SIZE); srd(SOUT, 18, 3670016); srd(SWOA, 8, 401408); srd(SWOB, 16, 401408)
job_ids()
a(f'''
s_lshl1_add_u32 s{sHB}, s{sGRP}, s{sSG}
s_cmp_eq_u32 s{sROLE}, 1
s_cbranch_scc1 L_GB
v_and_b32 v2, 51, v0
v_bfe_u32 v3, v0, 2, 1
v_lshl_or_b32 v2, v3, 3, v2
v_bfe_u32 v3, v0, 3, 1
v_lshl_or_b32 v2, v3, 2, v2
v_lshlrev_b32 v14, 4, v2
s_mul_i32 s73, s{sGRP}, 6
s_add_u32 s73, s73, s{sSG}
s_lshl1_add_u32 s74, s{sTB}, s{sTH}
s_lshl_b32 s74, s74, 1
s_cmp_ge_u32 s{sGRP}, 6
s_cbranch_scc1 L_G_NNN
s_cmp_eq_u32 s{sGRP}, 5
s_cbranch_scc1 L_G_TNN
''')
vPI = 14
acc = lambda tt, j: vACC + 16 * (2 * j + tt)
xf = lambda b, tt: vFR + 20 * b + 4 * tt
wf = lambda b, j: vFR + 20 * b + 8 + 4 * j
def gemm(pat, order, fill, extra=None, tail_reads=None):
    lg = Ctr('lgkmcnt')
    def addr(n):
        s, ks = n >> 2, n & 3
        b = stg_base(s); return ks, b >= 2 * STG, b % (2 * STG)
    def rd_x(n, tt, dst):
        if OPT['nolds']: return
        ks, hi, b = addr(n)
        a(f'ds_read_b128 {vr(dst,4)}, v{(vXR2 if hi else vXR)+ks} offset:{b + tt*4096}'); lg.add(('x', n))
    def rd_w(n, j, dst):
        if OPT['nolds']: return
        ks, hi, b = addr(n)
        for jj in range(2):
            a(f'ds_read_b64_tr_b16 {vr(dst+2*jj,2)}, v{vWR2 if hi else vWR} offset:{b + j*8192 + ks*2048 + jj*512}'); lg.add(('w', n, j))
    def mf(n, j, tt, X, W):
        A, B = (W, X) if pat[j] == 'T' else (X, W)
        if OPT['nomfma']: return
        a(f'{MF} {vr(acc(tt,j),16)}, {vr(A,4)}, {vr(B,4)}, {vr(acc(tt,j),16) if n else 0}')
    xl = lambda ks, tt: vXL + 8 * ks + 4 * tt
    wl = lambda p: vWL + 4 * (p % 4)
    def tail_rd(p):
        if p >= 12: return
        j, ks = order[p >> 2], p & 3
        if p < 4: rd_x(24 + ks, 0, xl(ks, 0)); rd_x(24 + ks, 1, xl(ks, 1))
        rd_w(24 + ks, j, wl(p))
    stamp(13)
    a('s_barrier')
    stamp(1)
    rd_x(0, 0, xf(0,0)); rd_x(0, 1, xf(0,1))
    for j in range(3): rd_w(0, j, wf(0,j))
    for n in range(24):
        b = n & 1; nb = 1 - b
        M = lambda j, tt: mf(n, j, tt, xf(b,tt), wf(b,j))
        lg.wait(('x', n), ('w', n, 0))
        M(0, 0)
        if (n & 3) == 3: a('s_barrier')
        if n < 23: rd_x(n+1, 0, xf(nb,0)); rd_x(n+1, 1, xf(nb,1))
        else: tail_rd(0)
        M(0, 1)
        if n < 23: rd_w(n+1, 0, wf(nb,0))
        lg.wait(('w', n, 1))
        M(1, 0)
        if n < 23: rd_w(n+1, 1, wf(nb,1))
        else: tail_rd(1)
        M(1, 1)
        if n < 23: rd_w(n+1, 2, wf(nb,2))
        lg.wait(('w', n, 2))
        M(2, 0); M(2, 1)
    q = []
    def drain(k):
        n = 0
        while q and n < k:
            g = q.pop(0); a(g); n += len([l for l in g.strip().split('\n') if l.strip()])
    for p in range(12):
        j, ks = order[p >> 2], p & 3
        lg.wait(('x', 24 + ks), ('w', 24 + ks, j))
        mf(24 + ks, j, 0, xl(ks, 0), wl(p))
        tail_rd(p + 2)
        if tail_reads and p in tail_reads: tail_reads[p](lg)
        drain(OPT['nfill'] - 1)
        mf(24 + ks, j, 1, xl(ks, 1), wl(p))
        drain(OPT['nfill'])
        if extra and p in extra: drain(999); extra[p](lg)
        if not OPT['p1only']: q += fill.get(p, [])
    stamp(2)
    if OPT['p1only']: a('s_branch L_fin')
    drain(999)
def epiA(j, typ):
    g = []
    P = vPK + 16 * (j & 1)
    g += f'''s_add_u32 s76, s73, {2*j}
    s_and_b32 s77, s76, 15
    s_lshl_b32 s77, s77, 6
    s_add_u32 s77, s77, s74'''.split('\n')
    if typ == 'T':
        g.append(f'''s_cmp_lt_u32 s76, 16
        s_cselect_b32 s78, 11, 12
        s_cselect_b32 s79, {QF >> 20}, {KVF >> 20}
        s_cselect_b32 s80, {hex(QSCALE)}, 1.0
        s_cselect_b32 s82, 0, 0x3f803f80''')
        g += f'''s_lshl_b32 s77, s77, s78
        s_lshl_b32 s79, s79, 20
        s_add_u32 s77, s77, s79
        s_lshl_b32 s78, 1, s78
        s_add_u32 s78, s78, s77'''.split('\n')
        for tt in range(2):
            A = acc(tt, j); p = P + 8 * tt
            for c in range(2):
                for i in range(8*c, 8*c+8): g.append(f'v_mul_f32 v{A+i}, s80, v{A+i}')
                for i in range(4*c, 4*c+4): g.append(f'v_cvt_pk_bf16_f32 v{p+i}, v{A+2*i}, v{A+2*i+1}')
                if c: g.append(f's_mov_b32 exec_lo, 0\nv_mov_b32 v{p+6}, s82\nv_mov_b32 v{p+7}, 0\ns_mov_b32 exec_lo, -1')
                g.append(f'buffer_store_dwordx4 {vr(p+4*c,4)}, v{vPI}, {WSR}, s{77+tt} offen offset:{1024*c} sc1')
    else:
        g += f'''s_lshl_b32 s77, s77, 12
        s_add_u32 s77, s77, {KVF}
        s_add_u32 s78, s77, 4096
        s_mov_b32 s80, 0x3f803f80
        s_mov_b32 s81, 0x3f803f80
        s_mov_b32 s82, 0x10000000
        s_mov_b32 s83, 0x10000000
        s_nop 0'''.split('\n')
        for tt in range(2):
            A = acc(tt, j); p = P + 8 * tt
            for c in range(2):
                for i in range(4*c, 4*c+4): g.append(f'v_cvt_pk_bf16_f32 v{p+i}, v{A+2*i}, v{A+2*i+1}')
                g.append(f's_mov_b64 exec, s[82:83]\nv_mov_b64 v[{p+4*c}:{p+4*c+1}], s[80:81]\nv_mov_b64 v[{p+4*c+2}:{p+4*c+3}], s[80:81]\ns_mov_b64 exec, -1')
                g.append(f'buffer_store_dwordx4 {vr(p+4*c,4)}, v1, {WSR}, s{77+tt} offen offset:{2048+1024*c} sc1')
    return g
for pat in ('TTT', 'TNN', 'NNN'):
    a.label('L_G_' + pat)
    gemm(pat, (0, 1, 2), {3: epiA(0, pat[0]), 7: epiA(1, pat[1]), 11: epiA(2, pat[2])})
    if pat != 'NNN': a('s_branch L_GA_done')
a.label('L_GA_done')
a(f'''
s_mul_i32 s76, s{sGRP}, 3
v_add_u32 v2, s76, v0
v_lshlrev_b32 v2, 4, v2
v_add_u32 v2, s{sTB}, v2
v_lshlrev_b32 v2, 7, v2
v_mov_b32 v3, 1
s_cmp_lg_u32 s{sW}, 0
s_waitcnt vmcnt(0)
s_barrier
s_cbranch_scc1 L_GA_nf
s_mov_b64 exec, 7
buffer_store_dword v3, v2, {WSR}, 0 offen sc1
s_mov_b64 exec, -1
''')
a.label('L_GA_nf')
stamp(3)
a('s_barrier')
if OPT['gidle']: a('s_branch L_fin')
a(f's_cmp_lg_u32 s{sW}, 0\ns_cbranch_scc1 L_G_wo')
a(f'''
s_lshl4_add_u32 s76, s{sGRP}, s{sTB}
s_lshr_b32 s77, s76, 2
s_lshl_b32 s78, s77, 11
s_add_u32 s79, s78, {FKV}
v_lshlrev_b32 v15, 7, v0
v_add_u32 v15, s79, v15
s_lshl_b32 s82, s76, 7
s_add_u32 s82, s82, {FKS}
s_lshl_b32 s78, s77, 16
s_and_b32 s79, s76, 3
s_lshl_b32 s79, s79, 10
s_add_u32 s78, s78, s79
s_add_u32 s78, s78, {PART}
''')
poll(15, SWS, 0xffff, 2, sleep=OPT['gsleep'])
stamp(4)
for p in range(16):
    a(f'buffer_load_dwordx4 {vr(16+4*p,4)}, v1, {WSR}, s78 offen sc1')
    if p < 15: a('s_add_u32 s78, s78, 4096')
a(f'''
s_lshr_b32 s78, s76, 1
s_lshl_b32 s78, s78, 10
s_and_b32 s79, s76, 1
s_lshl3_add_u32 s78, s79, s78
s_add_u32 s78, s78, {KVS}
''')
for p in range(1, 16):
    if p % 4 == 1: a(f's_waitcnt vmcnt({max(0, 15-(p+3))})')
    for e in range(4): a(f'v_add_f32 v{16+e}, v{16+e}, v{16+4*p+e}')
a(f'''
v_cvt_pk_bf16_f32 v16, v16, v17
v_cvt_pk_bf16_f32 v17, v18, v19
buffer_store_dwordx2 v[16:17], v1, {WSR}, s78 offen sc1
s_waitcnt vmcnt(0)
''')
setflag(82, 2, 3)
stamp(5)
a('s_branch L_G_wo')

a.label('L_GB')
a(f'''
v_lshl_add_u32 v2, v15, 2, v2
v_mul_u32_u24 v14, 56, v2
s_mul_i32 s76, s{sSG}, 1568
v_add3_u32 v14, v14, v3, s76
s_mov_b32 s76, {hex(f2u(LOG2E))}
s_mov_b32 s77, {hex(f2u(LOG2E))}
''')
vEP, vEN, vKA, vTR, vVO = 112, 128, 144, 160, 192
vMX = 240
def phi_reads(lg):
    for c in range(2):
        for jj in range(2):
            a(f'ds_read_b64_tr_b16 {vr(vPH+4*c+2*jj,2)}, v14 offset:{L_PHI + (16*c+8*jj)*56}'); lg.add('phi')
def f_pack(j, base):
    g = []
    for tt in range(2):
        X = acc(tt, j); p = base + 8 * tt
        for i in range(8): g.append(f'v_cvt_pk_bf16_f32 v{p+i}, v{X+2*i}, v{X+2*i+1}')
        g.append(f's_mov_b32 exec_lo, 0\nv_mov_b64 v[{p+6}:{p+7}], 0\ns_mov_b32 exec_lo, -1')
    return g
def f_proj(j, base):
    def f(lg):
        lg.wait('phi')
        a('s_nop 0')
        for tt in range(2):
            Y = acc(tt, j); p = base + 8 * tt
            a(f'{MF} {vr(Y,16)}, {vr(vPH,4)}, {vr(p,4)}, 0')
            a(f'{MF} {vr(Y,16)}, {vr(vPH+4,4)}, {vr(p+4,4)}, {vr(Y,16)}')
    return f
def f_minmax(Y, m):
    g = [f'v_max3_f32 v{m}, v{Y}, v{Y+1}, v{Y+2}', f'v_min3_f32 v{m+2}, v{Y}, v{Y+1}, v{Y+2}']
    for i in range(3, 11, 2): g += [f'v_max3_f32 v{m}, v{m}, v{Y+i}, v{Y+i+1}', f'v_min3_f32 v{m+2}, v{m+2}, v{Y+i}, v{Y+i+1}']
    g += [f'v_max_f32 v{m}, v{m}, v{Y+11}', f'v_min_f32 v{m+2}, v{m+2}, v{Y+11}']
    g.append('s_mov_b32 exec_hi, 0\n' + ''.join(f'v_max3_f32 v{m}, v{m}, v{Y+i}, v{Y+i+1}\nv_min3_f32 v{m+2}, v{m+2}, v{Y+i}, v{Y+i+1}\n' for i in (12, 14)) + 's_mov_b32 exec_hi, -1')
    g += f'''v_mov_b32 v{m+1}, v{m}
    v_mov_b32 v{m+3}, v{m+2}
    s_nop 0
    v_permlane32_swap_b32 v{m}, v{m+1}
    v_permlane32_swap_b32 v{m+2}, v{m+3}
    v_max_f32 v{m}, v{m}, v{m+1}
    v_min_f32 v{m+2}, v{m+2}, v{m+3}
    v_mul_f32 v{m}, s76, v{m}
    v_mul_f32 v{m+2}, s76, v{m+2}'''.split('\n')
    return g
def f_soft(Y, m):
    for i in range(0, 16, 2):
        a(f'v_pk_fma_f32 {vr(vEP+i,2)}, {vr(Y+i,2)}, s[76:77], v[{m}:{m+1}] op_sel_hi:[1,1,0] neg_lo:[0,0,1] neg_hi:[0,0,1]')
        a(f'v_pk_fma_f32 {vr(vEN+i,2)}, {vr(Y+i,2)}, s[76:77], v[{m+2}:{m+3}] op_sel_hi:[1,1,0] neg_lo:[1,0,0] neg_hi:[1,0,0]')
    for i in range(16): a(f'v_exp_f32 v{vEP+i}, v{vEP+i}')
    for i in range(16): a(f'v_exp_f32 v{vEN+i}, v{vEN+i}')
    a('s_mov_b32 exec_lo, 0')
    for b in (vEP, vEN): a(f'v_mov_b64 v[{b+12}:{b+13}], 0\nv_mov_b64 v[{b+14}:{b+15}], 0')
    a('s_mov_b32 exec_lo, -1')
    a(f'v_pk_add_f32 v[{m}:{m+1}], {vr(vEP,2)}, {vr(vEP+2,2)}\nv_pk_add_f32 v[{m+2}:{m+3}], {vr(vEN,2)}, {vr(vEN+2,2)}')
    for i in range(4, 16, 2): a(f'v_pk_add_f32 v[{m}:{m+1}], v[{m}:{m+1}], {vr(vEP+i,2)}\nv_pk_add_f32 v[{m+2}:{m+3}], v[{m+2}:{m+3}], {vr(vEN+i,2)}')
    a(f'''
    v_add_f32 v{m}, v{m}, v{m+1}
    v_add_f32 v{m+2}, v{m+2}, v{m+3}
    v_mov_b32 v{m+1}, v{m}
    v_mov_b32 v{m+3}, v{m+2}
    s_nop 0
    v_permlane32_swap_b32 v{m}, v{m+1}
    v_permlane32_swap_b32 v{m+2}, v{m+3}
    v_add_f32 v{m}, v{m}, v{m+1}
    v_add_f32 v{m+2}, v{m+2}, v{m+3}
    v_rcp_f32 v{m}, v{m}
    v_rcp_f32 v{m+2}, v{m+2}
    ''')
    for i in range(0, 16, 2): a(f'v_pk_mul_f32 {vr(vEP+i,2)}, {vr(vEP+i,2)}, v[{m}:{m+1}] op_sel_hi:[1,0]')
    for i in range(0, 16, 2): a(f'v_pk_mul_f32 {vr(vEN+i,2)}, {vr(vEN+i,2)}, v[{m+2}:{m+3}] op_sel_hi:[1,0]')
    for i in range(8): a(f'v_cvt_pk_bf16_f32 v{Y+i}, v{vEP+2*i}, v{vEP+2*i+1}')
    for i in range(8): a(f'v_cvt_pk_bf16_f32 v{Y+8+i}, v{vEN+2*i}, v{vEN+2*i+1}')
setupB1 = f'''s_lshl_b32 s78, s{sSG}, 14
s_add_u32 s78, s78, {L_PK}
s_lshl_b32 s79, s{sTH}, 12
v_and_b32 v248, 31, v0
v_bfe_u32 v249, v248, 1, 3
v_xor_b32 v249, v249, v15
v_lshlrev_b32 v249, 3, v249
v_lshl_or_b32 v249, v248, 6, v249
s_add_u32 s80, s78, s79
v_add_u32 v4, s80, v249
v_xor_b32 v5, 16, v4
v_xor_b32 v6, 32, v4
v_xor_b32 v7, 48, v4'''.split('\n')
setupB2 = f'''v_lshrrev_b32 v248, 1, v2
v_lshlrev_b32 v248, 3, v248
v_xor_b32 v248, v248, v3
v_lshl_or_b32 v250, v2, 6, v248
s_lshl1_add_u32 s80, s79, s78
s_add_u32 s81, s80, s79
v_add_u32 v248, s81, v250
v_xor_b32 v249, 32, v248
v_xor_b32 v250, 4096, v248
v_xor_b32 v251, 32, v250
s_lshl_b32 s80, s{sWQ}, 12
s_add_u32 s80, s80, {L_VX}
v_add_u32 v252, s80, v1
s_xor_b32 s80, s{sWQ}, 2
s_lshl_b32 s80, s80, 12
s_add_u32 s80, s80, {L_VX}
v_add_u32 v253, s80, v1
s_mov_b32 s80, 0x3f803f80
s_mov_b32 s81, 0x3f803f80
s_mov_b32 s82, 0x10000000
s_mov_b32 s83, 0x10000000'''.split('\n')
assert L_PK % 8192 == 0
gemm('TTN', (1, 0, 2),
     {3: setupB1 + f_pack(1, vPK), 7: setupB2 + f_pack(0, vPK + 16), 11: f_minmax(acc(0,1), vMX) + f_minmax(acc(1,1), vMX + 4)},
     extra={7: f_proj(1, vPK), 11: f_proj(0, vPK + 16)}, tail_reads={4: phi_reads})
for tt in range(2):
    V = acc(tt, 2)
    for i in range(8): a(f'v_cvt_pk_bf16_f32 v{V+i}, v{V+2*i}, v{V+2*i+1}')
    a('s_mov_b64 exec, s[82:83]')
    for i in range(0, 8, 2): a(f'v_mov_b64 v[{V+i}:{V+i+1}], s[80:81]')
    a('s_mov_b64 exec, -1')
    for m in range(2): a(f'ds_write_b128 v252, {vr(V+4*m,4)} offset:{2048*tt+1024*m}')
for tt in range(2):
    K = acc(tt, 1)
    f_soft(K, vMX + 4 * tt)
    for s in range(2):
        for g4 in range(4): a(f'ds_write_b64 v{4+g4}, {vr(K+8*s+2*g4,2)} offset:{8192*s+2048*tt}')
a('s_waitcnt lgkmcnt(0)')
stamp(3)
a('s_barrier')
lg = Ctr('lgkmcnt')
def kv_reads(o, tt):
    for m in range(2):
        for jj in range(2):
            a(f'ds_read_b64_tr_b16 {vr(vTR+16*o+8*tt+4*m+2*jj,2)}, v{248+2*o+jj} offset:{2048*tt+1024*m+512*jj}'); lg.add((o, tt, m))
        if o: a(f'ds_read_b128 {vr(vVO+8*tt+4*m,4)}, v253 offset:{2048*tt+1024*m}'); lg.add((o, tt, m))
kv_reads(0, 0); kv_reads(0, 1); kv_reads(1, 0)
fq = f_minmax(acc(0,0), vMX) + f_minmax(acc(1,0), vMX + 4)
first = True
for o in range(2):
    for tt in range(2):
        for m in range(2):
            lg.wait((o, tt, m))
            Vf = (acc(tt, 2) + 4 * m) if o == 0 else (vVO + 8 * tt + 4 * m)
            a(f'{MF} {vr(vKA,16)}, {vr(vTR+16*o+8*tt+4*m,4)}, {vr(Vf,4)}, {0 if first else vr(vKA,16)}'); first = False
            if (o, tt, m) == (0, 1, 0): kv_reads(1, 1)
            n = 0
            while fq and n < 5:
                g = fq.pop(0); a(g); n += len(g.strip().split('\n'))
for g in fq: a(g)
a(f'''
s_lshl1_add_u32 s78, s{sHB}, s{sTH}
s_lshl4_add_u32 s78, s78, s{sTB}
s_lshl_b32 s82, s78, 7
s_add_u32 s82, s82, {FKV}
s_lshl_b32 s78, s78, 12
s_add_u32 s78, s78, {PART}
''')
for q in range(4): a(f'buffer_store_dwordx4 {vr(vKA+4*q,4)}, v1, {WSR}, s78 offen offset:{1024*q} sc1')
stamp(10)
for tt in range(2): f_soft(acc(tt, 0), vMX + 4 * tt)
stamp(4)
a('s_waitcnt vmcnt(0)')
setflag(82, 2, 3)
stamp(5)
a('s_barrier')
if OPT['gidle']: a('s_branch L_fin')
a.label('L_G_wo')
a(f's_cmp_ge_u32 s{sI}, 28\ns_cbranch_scc1 L_G_nowo')
a(f'''
v_lshrrev_b32 v10, 3, v0
v_and_b32 v11, 7, v0
v_bfe_u32 v12, v0, 4, 1
v_lshlrev_b32 v12, 2, v12
v_xor_b32 v11, v11, v12
v_mul_u32_u24 v10, 896, v10
v_lshl_add_u32 v4, v11, 4, v10
v_add_u32 v5, 6144, v4
v_add_u32 v6, 12288, v4
v_add_u32 v7, 18432, v4
s_lshl_b32 s78, s{sU}, 7
''')
for (srdw, img, n) in ((SWOB, L_WOB, 14), (SWOA, L_WOA, 8)):
    a(f's_mul_i32 s76, s{sWQ}, {n*8*896}\ns_add_u32 s76, s76, s78\ns_mul_i32 s77, s{sWQ}, {n*1024}')
    for g in range(0, n, 4):
        a(f's_add_u32 m0, s77, {img + g*1024}\ns_nop 0')
        for i in range(min(4, n - g)):
            a(f'buffer_load_dwordx4 v{4+i}, s[{srdw}:{srdw+3}], s76 offen offset:{1024*i} lds')
            a(f's_waitcnt vmcnt({OPT["pace"]})')
        if g + 4 < n: a(f's_add_u32 s76, s76, {32*896}')
if not OPT['wopf']:
    a(f'''
    s_mul_i32 s76, s{sWQ}, {48*896}
    s_add_u32 s76, s76, s78
    s_add_u32 s76, s76, {256*896}
    v_mul_u32_u24 v4, 896, v0
    s_mov_b32 exec_hi, 0xffff
    buffer_load_dword v255, v4, s[{SWOA}:{SWOA+3}], s76 offen
    s_mov_b32 exec_hi, -1
    ''')
stamp(14)
a.label('L_G_nowo')
a(f's_cmp_eq_u32 s{sROLE}, 0\ns_cbranch_scc1 L_G_p3')
vY = 112
a(f'''
s_lshl_b32 s79, s{sHB}, 10
s_add_u32 s79, s79, {FKS}
v_lshlrev_b32 v15, 7, v0
v_add_u32 v15, s79, v15
s_lshl_b32 s78, s{sHB}, 12
s_add_u32 s78, s78, {KVS}
''')
poll(15, SWS, 0xff, 2, sleep=OPT['gsleep'])
stamp(15)
for q in range(4): a(f'buffer_load_dwordx4 {vr(48+4*q,4)}, v1, {WSR}, s78 offen offset:{1024*q} sc1')
a(f'''
s_lshl1_add_u32 s83, s{sTB}, s{sTH}
s_lshl_b32 s78, s83, 5
s_add_u32 s78, s78, s{sHB}
s_lshl_b32 s78, s78, 11
s_add_u32 s78, s78, {OF + 0x200000}
s_add_u32 s79, s78, 32768
s_lshl4_add_u32 s82, s83, s{sHB}
s_lshl_b32 s82, s82, 7
s_add_u32 s82, s82, {FOB}
s_waitcnt vmcnt(0)
''')
for tt in range(2):
    for q in range(4):
        a(f'{MF} {vr(vY+16*tt,16)}, {vr(48+4*q,4)}, {vr(acc(tt,0)+4*q,4)}, {vr(vY+16*tt,16) if q else 0}')
a('s_nop 7')
for tt in range(2):
    N = vY + 16 * tt; p = 64 + 8 * tt
    a(f'''
    v_mov_b32 v4, v{N+12}
    v_mov_b32 v5, v{N+12}
    s_nop 1
    v_permlane32_swap_b32 v4, v5
    v_add_f32 v4, {hex(f2u(1e-6))}, v5
    v_rcp_f32 v4, v4
    s_nop 0
    ''')
    for i in range(16): a(f'v_mul_f32 v{N+i}, v{N+i}, v4')
    for i in range(8): a(f'v_cvt_pk_bf16_f32 v{p+i}, v{N+2*i}, v{N+2*i+1}')
    a(f's_mov_b32 exec_lo, 0\nv_mov_b64 v[{p+6}:{p+7}], 0\ns_mov_b32 exec_lo, -1')
    for c in range(2): a(f'buffer_store_dwordx4 {vr(p+4*c,4)}, v1, {WSR}, s{78+tt} offen offset:{1024*c} sc1')
a('s_waitcnt vmcnt(0)')
setflag(82, 2, 3)
stamp(6)
a.label('L_G_p3')
a(f's_cmp_ge_u32 s{sI}, 28\ns_cbranch_scc1 L_fin')
p3_setup(1, L_WOB, L_GX)
poll(vPF, SWS, 0xff, 12, sleep=OPT['gsleep'])
stamp(11)
p3_loads()
a('s_waitcnt vmcnt(0)')
stamp(7)
a('s_barrier')
a('s_branch L_p3')

a.label('L_code_end')
a.label('L_fallback')
a(f'''
s_mov_b32 exec_lo, 0
v_mov_b32 v{Q3+6}, 0
s_mov_b32 exec_lo, -1
s_lshl_b32 s76, s{sH}, 18
s_add_u32 s76, s76, {KVF}
s_mov_b32 s77, s76
s_add_u32 s78, s76, {64*4096}
v_mov_b32 v12, 0xff800000
''')
a.label('L_fb1')
a(f'''
buffer_load_dwordx4 {vr(vKV,4)}, v1, {WSR}, s77 offen sc1
buffer_load_dwordx4 {vr(vKV+4,4)}, v1, {WSR}, s77 offen offset:1024 sc1
s_waitcnt vmcnt(0)
{MF} {vr(vS,16)}, {vr(vKV,4)}, {vr(Q3,4)}, 0
{MF} {vr(vS,16)}, {vr(vKV+4,4)}, {vr(Q3+4,4)}, {vr(vS,16)}
s_nop 11
''')
for i in range(0, 16, 2): a(f'v_max3_f32 v12, v12, v{vS+i}, v{vS+i+1}')
a(f'''
s_add_u32 s77, s77, 4096
s_cmp_lt_u32 s77, s78
s_cbranch_scc1 L_fb1
v_mov_b32 v13, v12
s_nop 1
v_permlane32_swap_b32 v12, v13
v_max_f32 v12, v12, v13
''')
for i in range(0, 16, 2): a(f'v_mov_b64 v[{vA+i}:{vA+i+1}], 0')
a.label('L_fb2')
for c in range(4): a(f'buffer_load_dwordx4 {vr(vKV+4*c,4)}, v1, {WSR}, s76 offen offset:{1024*c} sc1')
a(f'''
s_waitcnt vmcnt(0)
{MF} {vr(vS,16)}, {vr(vKV,4)}, {vr(Q3,4)}, 0
{MF} {vr(vS,16)}, {vr(vKV+4,4)}, {vr(Q3+4,4)}, {vr(vS,16)}
s_nop 11
''')
for i in range(16): a(f'v_sub_f32 v{vS+i}, v{vS+i}, v12')
for i in range(16): a(f'v_exp_f32 v{vS+i}, v{vS+i}')
a(f'''
s_nop 1
{SM} {vr(vA,16)}, {vr(vKV+8,4)}, {vr(vS,8)}, v{vIDX}
{SM} {vr(vA,16)}, {vr(vKV+12,4)}, {vr(vS+8,8)}, v{vIDX}
s_add_u32 s76, s76, 4096
s_cmp_lt_u32 s76, s78
s_cbranch_scc1 L_fb2
s_nop 11
''')
rowsum()
a('s_nop 0')
scale_pack()
a('s_branch L_ostore')

bad = check_hazards(a.lines)
for b in bad: print('HAZARD', b, file=sys.stderr)
import re
for l in a.lines:
    m = re.search(r'lgkmcnt\((\d+)\)', l)
    assert not (m and int(m.group(1)) > 15), l

hdr = open('cdna_kernels/' + NAME + '.s.ref').read().split('; @launch')[0]
out = hdr + '; @launch grid=(256,1,1) block=(512,1,1) lds=163840\n'
out += f'''.amdgcn_target "amdgcn-amd-amdhsa--gfx950"
.text
.globl {NAME}_kernel
.p2align 8
.type {NAME}_kernel,@function
''' + a.text() + f'''.section .rodata,"a"
.p2align 6
.amdhsa_kernel {NAME}_kernel
  .amdhsa_next_free_vgpr 256
  .amdhsa_next_free_sgpr 102
  .amdhsa_accum_offset 256
  .amdhsa_group_segment_fixed_size 0
  .amdhsa_kernarg_size 80
  .amdhsa_user_sgpr_count 2
  .amdhsa_user_sgpr_kernarg_segment_ptr 1
  .amdhsa_system_sgpr_workgroup_id_x 1
.end_amdhsa_kernel
'''
open(sys.argv[1], 'w').write(out)
```

```python
import re

def vr(a, n=1):
    return f'v{a}' if n == 1 else f'v[{a}:{a+n-1}]'
def sr(a, n=1):
    return f's{a}' if n == 1 else f's[{a}:{a+n-1}]'

class Asm:
    def __init__(self):
        self.lines = []
        self.nlab = 0
    def __call__(self, text):
        for l in text.split('\n'):
            l = l.strip()
            if l: self.lines.append(l)
    def label(self, name):
        self.lines.append(name + ':')
    def newlabel(self, base='L'):
        self.nlab += 1
        return f'{base}_{self.nlab}'
    def comment(self, t):
        self.lines.append('; ' + t)
    def text(self):
        out = []
        for l in self.lines:
            if l.endswith(':') or l.startswith('.') : out.append(l)
            else: out.append('    ' + l)
        return '\n'.join(out) + '\n'

REG = re.compile(r'\b([vsa])(?:(\d+)|\[(\d+):(\d+)\])')
def regs_of(op):
    out = set()
    for m in REG.finditer(op):
        k = m.group(1)
        if m.group(2) is not None: out.add((k, int(m.group(2))))
        else:
            for i in range(int(m.group(3)), int(m.group(4)) + 1): out.add((k, i))
    if re.search(r'\bvcc\b', op): out.add(('s', 'vcc'))
    if re.search(r'\bexec\b', op): out.add(('s', 'exec'))
    if re.search(r'\bm0\b', op): out.add(('s', 'm0'))
    return out

TRANS = ('v_exp_', 'v_log_', 'v_rcp_', 'v_rsq_', 'v_sqrt_', 'v_sin_', 'v_cos_')
def parse(line):
    line = line.split(';')[0].strip()
    if not line or line.endswith(':') or line.startswith('.'): return None
    sp = line.split(None, 1)
    mn = sp[0]; rest = sp[1] if len(sp) > 1 else ''
    ops = [o.strip() for o in re.split(r',(?![^\[]*\])', rest)] if rest else []
    d = dict(mn=mn, line=line, w=set(), r=set(), kind='other', srcc=set(), ab=set(), states=1)
    if mn == 's_nop': d['states'] = int(rest) + 1
    if mn.startswith('v_mfma') or mn.startswith('v_smfmac'):
        d['kind'] = 'mfma'
        d['w'] = regs_of(ops[0]); d['ab'] = regs_of(ops[1]) | regs_of(ops[2])
        if mn.startswith('v_smfmac'):
            d['srcc'] = regs_of(ops[0]); d['ab'] |= regs_of(ops[3])
        else: d['srcc'] = regs_of(ops[3])
        d['r'] = d['ab'] | d['srcc']
        d['passes'] = 8 if '32x32' in mn else 4
    elif mn.startswith('v_'):
        d['kind'] = 'valu'
        if mn.startswith('v_cmp'):
            d['w'] = regs_of(ops[0]); d['r'] = set().union(*[regs_of(o) for o in ops[1:]])
            if mn.startswith('v_cmpx'): d['w'].add(('s', 'exec'))
        elif mn.startswith('v_permlane') :
            d['w'] = regs_of(ops[0]) | regs_of(ops[1]); d['r'] = set(d['w']); d['perm'] = True
        else:
            d['w'] = regs_of(ops[0]); d['r'] = set().union(*[regs_of(o) for o in ops[1:]]) if len(ops) > 1 else set()
            if mn.startswith('v_fmac') or mn.startswith('v_pk_fmac'): d['r'] |= d['w']
            if '_co_' in mn: d['w'] |= regs_of(ops[1])
        d['trans'] = mn.startswith(TRANS)
        d['rdlane'] = mn.startswith('v_readlane') or mn.startswith('v_readfirstlane')
        d['dpp'] = 'quad_perm' in line or 'row_' in line
    elif mn.startswith('buffer_') or mn.startswith('global_'):
        d['kind'] = 'vmem'
        allr = set().union(*[regs_of(o) for o in ops])
        isload = '_load_' in mn and not re.search(r'\blds\b', line)
        if isload:
            d['w'] = regs_of(ops[0]); d['r'] = set().union(*[regs_of(o) for o in ops[1:]])
        else: d['r'] = allr
        if re.search(r'\blds\b', line): d['r'].add(('s', 'm0')); d['ldsdma'] = True
        if ('store_dwordx4' in mn or 'store_dwordx3' in mn):
            d['widestore'] = regs_of(ops[0] if mn.startswith('buffer_') else ops[1])
    elif mn.startswith('ds_'):
        d['kind'] = 'ds'
        if mn.startswith('ds_read') or '_rtn' in mn or 'permute' in mn or 'swizzle' in mn:
            d['w'] = regs_of(ops[0]); d['r'] = set().union(*[regs_of(o) for o in ops[1:]])
        else: d['r'] = set().union(*[regs_of(o) for o in ops])
    elif mn.startswith('s_'):
        d['kind'] = 'salu'
        if ops and not mn.startswith(('s_cmp', 's_cbranch', 's_branch', 's_waitcnt', 's_nop', 's_barrier', 's_sleep', 's_setprio', 's_bitcmp', 's_endpgm')):
            d['w'] = regs_of(ops[0]); d['r'] = set().union(*[regs_of(o) for o in ops[1:]]) if len(ops) > 1 else set()
            if 'saveexec' in mn: d['w'].add(('s', 'exec'))
        else:
            d['r'] = set().union(*[regs_of(o) for o in ops]) if ops else set()
    return d

def need_states(p, c):
    n = 0
    isv = lambda s: {x for x in s if x[0] in 'va'}
    iss = lambda s: {x for x in s if x[0] == 's'}
    if p['kind'] == 'valu':
        wv = isv(p['w']); ws = iss(p['w'])
        if c['kind'] == 'mfma':
            if wv & c['r']: n = max(n, 2)
            if ('s', 'exec') in ws: n = max(n, 4)
        if c['kind'] == 'valu':
            if c.get('perm') and wv & c['r']: n = max(n, 2)
            if c.get('dpp') and wv & c['r']: n = max(n, 2)
            if c.get('rdlane') and wv & c['r']: n = max(n, 1)
            if p.get('trans') and not c.get('trans') and wv & c['r']: n = max(n, 1)
            if ws & c['r']: n = max(n, 2)
        if c['kind'] == 'vmem' and ws & c['r']: n = max(n, 5)
        if c['kind'] == 'salu' and ws & c['r']: n = max(n, 1)
    if p['kind'] == 'mfma':
        ps = p['passes']
        big = {4: 8, 8: 12}[ps]; ov = {4: 6, 8: 10}[ps]; war = {4: 3, 8: 7}[ps]
        if c['kind'] == 'mfma':
            if p['w'] & c['ab']: n = max(n, big)
            if p['w'] & c['srcc']:
                if not (p['w'] == c['srcc'] and ps == c['passes']): n = max(n, ov)
            elif p['w'] & c['w'] and not (p['w'] == c['w'] and ps == c['passes']): n = max(n, ov)
        elif c['kind'] in ('valu', 'vmem', 'ds'):
            if p['w'] & (c['r'] | c['w']): n = max(n, big)
            if c['kind'] == 'valu' and p['srcc'] & c['w']: n = max(n, war)
    if p['kind'] == 'vmem' and p.get('widestore'):
        if p['widestore'] & c['w']: n = max(n, 2 if c['kind'] == 'valu' else 1)
    if p['kind'] == 'salu' and ('s', 'm0') in p['w'] and c.get('ldsdma'): n = max(n, 1)
    return n

def check_hazards(lines):
    ins = []; labels = {}
    for l in lines:
        ls = l.split(';')[0].strip()
        if ls.endswith(':'): labels[ls[:-1]] = len(ins); continue
        d = parse(l)
        if d: ins.append(d)
    bad = []
    for i, p in enumerate(ins):
        if p['kind'] not in ('valu', 'mfma', 'vmem', 'salu'): continue
        maxd = 12 if p['kind'] == 'mfma' else 5
        stack = [(i, 0)]; seen = set()
        while stack:
            j, dist = stack.pop()
            cur = ins[j]
            nxt = []
            if cur['mn'] == 's_endpgm': continue
            if cur['mn'] == 's_branch' or (cur['mn'].startswith('s_cbranch') and ' L_w' not in cur['line']):
                t = cur['line'].split()[-1]
                if t in labels: nxt.append(labels[t])
            if cur['mn'] != 's_branch': nxt.append(j + 1)
            for k in nxt:
                if k >= len(ins) or (k, dist) in seen: continue
                seen.add((k, dist))
                c = ins[k]
                n = need_states(p, c)
                if n > dist: bad.append((p['line'], c['line'], n, dist))
                nd = dist + c['states']
                if nd < maxd: stack.append((k, nd))
    return bad

import subprocess, tempfile, os
def inst_sizes(lines):
    txt = '.amdgcn_target "amdgcn-amd-amdhsa--gfx950"\n.text\n' + '\n'.join(lines) + '\n'
    d = tempfile.mkdtemp()
    open(d + '/a.s', 'w').write(txt)
    r = subprocess.run(['clang', '-x', 'assembler', '-target', 'amdgcn-amd-amdhsa', '-mcpu=gfx950', '-c', d + '/a.s', '-o', d + '/a.o'], capture_output=True, text=True)
    assert r.returncode == 0, r.stderr[:3000]
    out = subprocess.run(['llvm-objdump', '-d', '--mcpu=gfx950', d + '/a.o'], capture_output=True, text=True).stdout
    sz = []
    for l in out.split('\n'):
        m = re.search(r'//\s*[0-9A-F]+:((?:\s+[0-9A-F]{8})+)', l)
        if m: sz.append(4 * len(m.group(1).split()))
    res = []; k = 0
    for l in lines:
        if parse(l): res.append(sz[k]); k += 1
        else: res.append(None)
    assert k == len(sz), (k, len(sz))
    return res

PROMOTE = ('v_exp_f32', 'v_rcp_f32', 'v_add_f32', 'v_mul_f32', 'v_max_f32', 'v_min_f32', 'v_mov_b32', 'v_sub_f32', 'v_add_u32', 'v_xor_b32', 'v_and_b32', 'v_lshlrev_b32', 'v_lshrrev_b32', 'v_mov_b64')
def align_runs(lines, minrun=5):
    sz = inst_sizes(lines)
    out = []; osz = []; off = 0; i = 0; n = len(lines); nfix = 0
    lastrun = 0
    while i < n:
        if sz[i] == 8 and (not osz or osz[-1] != 8):
            j = i; cnt = 0
            while j < n and sz[j] in (8, None):
                cnt += sz[j] == 8; j += 1
            if cnt >= minrun:
                if off % 8 == 4:
                    k = len(out) - 1; done = False
                    while k >= lastrun and len(out) - k <= 6:
                        mn = out[k].split()[0]
                        if osz[k] == 4 and mn in PROMOTE:
                            out[k] = out[k].replace(mn, mn + '_e64', 1); osz[k] = 8; done = True; break
                        k -= 1
                    if not done: out.append('s_nop 0'); osz.append(4)
                    off += 4; nfix += 1
                while i < j:
                    out.append(lines[i]); osz.append(sz[i]); off += sz[i] or 0; i += 1
                lastrun = len(out)
                continue
        out.append(lines[i]); osz.append(sz[i]); off += sz[i] or 0; i += 1
    return out, nfix

def insert_warm_chains(lines, spacing):
    probe = [l for l in lines]
    names = sorted({l.split()[2] for l in lines if l.startswith('; WARM ')})
    extra = [f'L_w{n}_q{k}:' for n in names for k in range(4)]
    sz = inst_sizes(probe + extra)[:len(lines)]
    out = []; cur = None; since = 0; cnt = {n: 0 for n in names}; pos = {n: [] for n in names}
    def pad():
        k = cnt[cur]; cnt[cur] += 1
        pos[cur].append(len(out))
        out.append(f'L_w{cur}{k}:'); out.append(f's_cbranch_execz L_w{cur}{k+1}')
    for i, l in enumerate(lines):
        if l.startswith('; WARM '): cur = l.split()[2]; since = spacing; continue
        if l.startswith('; WARMEND'): cur = None; continue
        if cur and sz[i]:
            prev = out[-1].split()[0] if out else ''
            cheap = prev.startswith(('v_mfma', 'v_smfmac', 's_branch', 's_endpgm', 's_barrier'))
            if since >= spacing or (cheap and since >= spacing * 5 // 8):
                pad(); since = 4
            since += sz[i]
        out.append(l)
    for n in names:
        last = pos[n][-1] + 1
        out[last] = f's_cbranch_execz L_wret_{n}'
        for k in range(4):
            p = pos[n][k * len(pos[n]) // 4]
            out[p] = f'L_w{n}_q{k}:\n' + out[p]
    res = []
    for l in out: res += l.split('\n')
    return res, cnt
```

```python
import sys, math, struct
from asmlib import *

NAME = 'concat_heads__softmax_full_mha__linear_kernel_hedgehog__prompt'
OPT = dict(b8e=0, zpad=0, ldg=4, wrg=1, nokv=0, last=3, oba=0, ipad=0, woe=0, pace0=3, tid=0, bias=96, ldprio=0, rtry=0, wgf=0, pp=0, pp1=0, rmap=0, eflag=3, opf=0, gdelay=1, mode=0, wsp=128, wtail=0, wpre=0, cap=8, p3prio=2, badtag=0, ack=0, wo1=10, wo2=20, kvst=2, done=4, tlb=0, bafter=2, x1early=0, outco=1, dyn=0, kvfirst=0, mprio=1, nowo=0, noload=0, gprio=0, tprio=0, align=1, r2=1, b9=5, qrot=3, pwlo=0, pwhi=256, rtab=0x26045230, warm=4, womall=13, p1only=0, nomfma=0, nolds=0, stamp=0, probe=-1, probeT=1, force_fb=0, rot=1, look0=10, look=10, nb=5, gidle=0, outsc=1, gsleep=4, psleep=1, prio=1, pace=2, nfill=4)
for a in sys.argv[2:]:
    k, v = a.split('='); assert k in OPT, k; OPT[k] = int(v, 0)

MF = 'v_mfma_f32_32x32x16_bf16'
SM = 'v_smfmac_f32_32x32x32_bf16'
def f2u(x): return struct.unpack('<I', struct.pack('<f', x))[0]
LOG2E = math.log2(math.e)
QSCALE = f2u(28 ** -0.5 * LOG2E)
BIAS = float(OPT['bias'])

FA, FKS, FOB, FKV, FOA = 0x0, 0xC000, 0x10000, 0x20000, 0x30000
EPOCH = 0x80000
KVS = 0x90000
STAMP = 0xA0000
QF, KVF, OF, PART, PHQ = 0x100000, 0x400000, 0x800000, 0xC00000, 0x1000000
WS_SIZE = 0x1400000
STG = 53248
L_RING = 4096
def stg_slot(s): return s % 3
L_PHI, L_PK, L_VX = 0, 73728, L_RING + 2 * STG + 16384
L_WOB, L_WOA, L_RED = 0, 57344, 114688
L_QX, L_PAIR = 57344, 65536
L_GX, L_TX, L_SY = L_RED, L_RED + 16384, L_RED + 32768

SX, SW, SWS, SDBG, SOUT, SWOA, SWOB, SPHI = 24, 28, 32, 36, 40, 44, 48, 52
sW, sWQ, sXC, sI, sROLE, sTB, sGRP, sH, sQB, sU, sTB64 = range(56, 67)
sT = 67
sPO, sPL = 84, 85
sSPIN = 90
sTAG = 92
vTAG = 248
vTW = 253
WSR = f's[{SWS}:{SWS+3}]'

a = Asm()
class Ctr:
    def __init__(self, name): self.name = name; self.q = []
    def add(self, tag, n=1): self.q += [tag] * n
    def need(self, *tags):
        idx = max([i for i, t in enumerate(self.q) if t in tags], default=-1)
        if idx < 0: return None
        n = len(self.q) - 1 - idx
        self.q = self.q[idx+1:]
        return n
    def wait(self, *tags):
        n = self.need(*tags)
        if n is not None: a(f's_waitcnt {self.name}({n})')
def srd(base, lo, size):
    a(f's_mov_b32 s{base}, s{lo}\ns_mov_b32 s{base+1}, s{lo+1}\ns_mov_b32 s{base+2}, {size}\ns_mov_b32 s{base+3}, 0x20000')
def stamp(idx):
    if not OPT['stamp']: return
    a(f's_memrealtime s[88:89]\ns_waitcnt lgkmcnt(0)\nv_writelane_b32 v254, s88, {idx}')
def poll(voff, mask, vtmp, sleep=1):
    L = a.newlabel('L_poll'); D = a.newlabel('L_polld')
    a(f's_mov_b64 exec, {mask}\ns_mov_b32 s{sSPIN}, 0x40000')
    a.label(L)
    a(f'buffer_load_dwordx2 {vr(vtmp,2)}, v{voff}, {WSR}, 0 offen sc1\ns_waitcnt vmcnt(0)')
    a(f'v_cmp_ne_u64 vcc, {vr(vTAG,2)}, {vr(vtmp,2)}\ns_cbranch_vccz {D}')
    if sleep: a(f's_sleep {sleep}')
    a(f's_sub_u32 s{sSPIN}, s{sSPIN}, 1\ns_cbranch_scc0 {L}')
    a.label(D)
    a('s_mov_b64 exec, -1')
def ppoll(voff, mask, regs, gap):
    L = a.newlabel('L_pp'); D = a.newlabel('L_ppd')
    ld = lambda r: a(f'buffer_load_dwordx2 {vr(r,2)}, v{voff}, {WSR}, 0 offen sc1')
    a(f's_mov_b64 exec, {mask}\ns_mov_b32 s{sSPIN}, 0x40000')
    for r in regs[:-1]: ld(r); a(f's_sleep {gap}')
    a.label(L)
    for i, r in enumerate(regs):
        ld(regs[i-1])
        a(f's_waitcnt vmcnt({len(regs)-1})\nv_cmp_ne_u64 vcc, {vr(vTAG,2)}, {vr(r,2)}\ns_cbranch_vccz {D}\ns_sleep {gap}')
    a(f's_sub_u32 s{sSPIN}, s{sSPIN}, 1\ns_cbranch_scc0 {L}')
    a.label(D)
    a('s_mov_b64 exec, -1')
def setflag(soff, mask=0xff):
    a(f's_mov_b64 exec, {mask}\nbuffer_store_dwordx4 {vr(vTAG,4)}, v1, {WSR}, s{soff} offen sc1\ns_mov_b64 exec, -1')
def tag_load():
    return f'buffer_load_dwordx4 {vr(vTAG,4)}, off, s[{SDBG}:{SDBG+3}], 0 sc1'
def tag_word(t):
    a(f'''
    v_and_b32 v{t}, 3, v0
    v_lshlrev_b32 v{t}, 4, v{t}
    v_lshrrev_b64 v[{t}:{t+1}], v{t}, {vr(vTAG,2)}
    v_lshlrev_b32 v{vTW}, 16, v{t}
    s_mov_b32 s86, 0x07060302
    s_mov_b32 s87, 0x07060100
    ''')
def tag_pack(p):
    a(f'''
    v_permlane32_swap_b32 v{p+6}, v{p+7}
    v_perm_b32 v{p+7}, v{vTW}, v{p+3}, s86
    v_perm_b32 v{p+3}, v{vTW}, v{p+3}, s87
    ''')
def warm(name):
    a('s_mov_b64 exec, 0')
    for k in range(1, 4): a(f's_cmp_eq_u32 s{sWQ}, {k}\ns_cbranch_scc1 L_w{name}_q{k}')
    a(f's_branch L_w{name}_q0\nL_wret_{name}:\ns_mov_b64 exec, -1')
def wo_touch(t):
    a(f'''
    s_lshl2_add_u32 s98, s2, s{sWQ}
    s_mulk_i32 s98, {4*128}
    v_lshlrev_b32 v{t}, 7, v0
    s_mov_b64 exec, 15
    buffer_load_dword v255, v{t}, s[{SWOA}:{SWOA+3}], s98 offen
    buffer_load_dword v255, v{t}, s[{SWOB}:{SWOB+3}], s98 offen
    {f'buffer_load_dword v255, v{t}, {WSR}, s98 offen' if OPT['warm'] & 4 else ''}
    s_mov_b64 exec, -1
    ''')
def job_ids():
    a(f'''
    s_mul_i32 s{sT}, s{sI}, 37
    s_lshr_b32 s{sT}, s{sT}, 8
    s_mul_i32 s{sT+1}, s{sT}, 7
    s_sub_u32 s{sU}, s{sI}, s{sT+1}
    s_lshl_b32 s{sTB64}, s{sXC}, 2
    s_add_u32 s{sTB64}, s{sTB64}, s{sT}
    ''')

a.label(NAME + '_kernel')
if OPT['stamp']: a('s_memrealtime s[86:87]')
a(f'''
s_cmp_ge_u32 s2, 256
s_cbranch_scc1 L_end
s_load_dwordx16 s[4:19], s[0:1], 0
s_load_dwordx4 s[20:23], s[0:1], 64
v_readfirstlane_b32 s{sW}, v0
v_and_b32 v0, 63, v0
s_lshr_b32 s{sW}, s{sW}, 6
s_cmp_lt_u32 s{sW}, 4
''')
def ipad():
    a('s_mov_b64 exec, 0\ns_bitcmp0_b32 s2, 3\ns_cbranch_scc1 L_ipA')
    for r in 'BA':
        if r == 'A': a.label('L_ipA')
        for k in range(1, 4): a(f's_cmp_eq_u32 s{sW}, {k}\ns_cbranch_scc1 L_wip{r}{k}')
        a(f's_branch L_wip{r}0')
if OPT['ipad'] == 2:
    a('s_cbranch_scc0 L_T'); ipad(); a.label('L_T')
else: a('s_cbranch_scc1 L_G')
a(f'''
{('s_bitcmp0_b32 s2, 3', 's_bitcmp1_b32 s2, 7', 's_bitcmp0_b32 s2, 7')[OPT['rmap']]}
s_cbranch_scc1 L_ldA
''')
def ids():
    a(f'''
    s_and_b32 s{sXC}, s2, 7
    s_lshr_b32 s{sI}, s2, 3
    ''')
    if OPT['rmap'] == 0: a(f's_and_b32 s{sROLE}, s{sI}, 1\ns_lshr_b32 s{sQB}, s{sI}, 1')
    else:
        if OPT['rmap'] == 1: a(f's_xor_b32 s{sI}, s{sI}, 16')
        a(f's_lshr_b32 s{sROLE}, s{sI}, 4\ns_and_b32 s{sQB}, s{sI}, 15')
    a(f'''
    s_lshr_b32 s{sT}, s{sXC}, 1
    s_and_b32 s{sTB}, s{sQB}, 3
    s_lshl2_add_u32 s{sTB}, s{sT}, s{sTB}
    s_and_b32 s{sT}, s{sXC}, 1
    s_lshr_b32 s{sGRP}, s{sQB}, 2
    s_lshl2_add_u32 s{sGRP}, s{sT}, s{sGRP}
    s_and_b32 s{sWQ}, s{sW}, 3
    v_lshlrev_b32 v1, 4, v0
    ''')
    if OPT['stamp']: a('v_mov_b32 v254, 0')

vX0, vW0, vH0 = 4, 5, 6
vXg, vWg, vHg = 20, 24, 32
sXo, sWo, sCX, sCW, sOOB, sW5, sRS = 70, 71, 72, 73, 74, 75, 91
sMX, sMW, sMH = 76, 80, 94
def ld_pre():
    ids()
    a(f'''
    v_lshrrev_b32 v16, 3, v0
    v_and_b32 v17, 7, v0
    v_lshrrev_b32 v18, 4, v0
    v_xor_b32 v13, v17, v18
    v_mul_u32_u24 v14, 896, v16
    v_lshl_add_u32 v{vX0}, v13, 4, v14
    s_lshl2_add_u32 s{sXo}, s{sTB}, s{sWQ}
    s_mul_i32 s{sXo}, s{sXo}, 28672
    s_mov_b32 s{SX+2}, 1835008
    s_mov_b32 s{SX+3}, 0x20000
    s_mov_b32 s{SW+2}, 1204224
    s_mov_b32 s{SW+3}, 0x20000
    ''')
    a(f's_lshl_b32 s{sRS}, s{sXC}, 2\ns_lshr_b32 s{sT}, {hex(OPT["rtab"] if OPT["rot"] else 0)}, s{sRS}\ns_and_b32 s{sRS}, s{sT}, 15\ns_lshl_b32 s{sT}, s{sRS}, 7\ns_add_u32 s{sXo}, s{sXo}, s{sT}')
    a(f"s_and_b32 s{sCX}, s{sGRP}, {3 if OPT['qrot'] & 1 else 0}")
def ld_pre2():
    a(f'''
    s_mul_i32 s{sWo}, s{sRS}, {64*2688}
    s_and_b32 s{sCW}, s{sTB}, {3 if OPT['qrot'] & 2 else 0}
    v_and_b32 v18, 1, v18
    v_lshlrev_b32 v13, 2, v18
    v_xor_b32 v13, v17, v13
    s_lshl_b32 s{sT}, s{sWQ}, 4
    v_add_u32 v14, s{sT}, v16
    v_mul_u32_u24 v14, 2688, v14
    v_lshl_add_u32 v{vW0}, v13, 4, v14
    ''')
def x_group(g):
    a(f'''
    s_add_u32 s{sT}, s{sCX}, {g}
    s_and_b32 s{sT}, s{sT}, 3
    s_lshl2_add_u32 s{sMX+g}, s{sWQ}, s{sT}
    s_lshl_b32 s{sMX+g}, s{sMX+g}, 10
    s_mul_i32 s{sT+1}, s{sT}, 7168
    s_and_b32 s{sT}, s{sT}, 1
    s_lshl_b32 s{sT}, s{sT}, 6
    v_xor_b32 v{vXg+g}, s{sT}, v{vX0}
    v_add_u32 v{vXg+g}, s{sT+1}, v{vXg+g}
    ''')
def ld_head(role):
    if OPT['ldprio'] & (1 << role): a('s_setprio 1')
    ld_pre()
    x_group(0)
    a(f'''
    s_waitcnt lgkmcnt(0)
    s_mov_b64 s[{SX}:{SX+1}], s[{4+6*role}:{5+6*role}]
    s_mov_b64 s[{SW}:{SW+1}], s[{6+6*role}:{7+6*role}]
    ''')
    if OPT['stamp']: a('v_writelane_b32 v254, s86, 0')
    stamp(11)
def w_setup(role):
    if role == 0:
        a(f'''
        s_mul_i32 s{sT+1}, s{sGRP}, 336
        s_and_b32 s{sT+2}, s{sT+1}, 127
        s_sub_u32 s{sT+1}, s{sT+1}, s{sT+2}
        s_add_u32 s{sWo}, s{sWo}, s{sT+1}
        s_cmp_gt_u32 s{sT+2}, 48
        s_cselect_b32 s{sOOB}, 4, 3
        ''')
    else:
        a(f'''
        s_mul_i32 s{sT+1}, s{sGRP}, 112
        s_and_b32 s{sT+2}, s{sT+1}, 127
        s_sub_u32 s{sT+1}, s{sT+1}, s{sT+2}
        s_add_u32 s{sWo}, s{sWo}, s{sT+1}
        s_cmp_gt_u32 s{sT+2}, 16
        s_cselect_b32 s{sOOB}, 0, 0x40000000
        s_and_b32 s{sT+2}, s{sT+2}, 64
        s_lshl_b32 s{sT+1}, s{sT+2}, 1
        v_add_u32 v{vW0}, s{sT+1}, v{vW0}
        s_sub_u32 s{sT+2}, 128, s{sT+2}
        s_add_u32 s{sT+2}, s{sT+2}, s{sOOB}
        v_lshrrev_b32 v13, 2, v13
        v_lshl_add_u32 v13, v13, 5, v16
        s_lshl_b32 s{sT}, s{sWQ}, 3
        v_add_u32 v13, s{sT}, v13
        v_mul_u32_u24 v13, 2688, v13
        v_and_b32 v14, 3, v0
        v_lshl_add_u32 v13, v14, 4, v13
        v_add_u32 v{vH0}, s{sT+2}, v13
        s_cmp_eq_u32 s{sCW}, 3
        s_cselect_b32 s{sCW}, 0, s{sCW}
        ''')
def w_group(role, g):
    if role == 0:
        a(f'''
        s_add_u32 s{sT}, s{sCW}, {g}
        s_and_b32 s{sT}, s{sT}, 3
        s_lshl2_add_u32 s{sMW+g}, s{sT}, s{sWQ}
        s_lshl_b32 s{sMW+g}, s{sMW+g}, 11
        s_cmp_eq_u32 s{sT}, s{sOOB}
        s_cselect_b32 s{sT}, 0x800000, s{sT}
        s_lshl_b32 s{sT}, s{sT}, 7
        v_add_u32 v{vWg+2*g}, s{sT}, v{vW0}
        v_add_u32 v{vWg+2*g+1}, 20480, v{vWg+2*g}
        ''')
    else:
        a(f'''
        s_add_u32 s{sT}, s{sCW}, {g}
        s_sub_u32 s{sT+1}, s{sT}, 3
        s_min_u32 s{sT}, s{sT}, s{sT+1}
        s_mul_i32 s{sT+1}, s{sT}, 12288
        s_lshl_b32 s{sT+2}, s{sWQ}, 10
        s_lshl1_add_u32 s{sMW+g}, s{sT+2}, s{sT+1}
        s_add_u32 s{sMH+g}, s{sT+2}, s{sT+1}
        s_mulk_i32 s{sT}, 896
        v_add_u32 v{vWg+2*g}, s{sT}, v{vW0}
        v_add_u32 v{vWg+2*g+1}, 20480, v{vWg+2*g}
        v_add_u32 v{vHg+g}, s{sT}, v{vH0}
        ''')
def p1_list(role):
    ops = []
    for g in range(4):
        ops.append(('x', g))
        if role == 0 or g < 3: ops += [('w', g, 0), ('w', g, 1)]
        if role == 1 and g < 3: ops.append(('h', g))
    return ops
def p1_op(role, s, op, resume=False, old=False):
    b = L_RING + stg_slot(s) * STG
    g = op[1]
    sw = sW5 if old else sWo
    if op[0] == 'x':
        if s == 0 and OPT['ipad']: a(f'L_wip{"AB"[role]}{g}:\ns_cbranch_execz L_wipr')
        if s == 0 and g > 0: x_group(g)
        a(f's_add_u32 m0, s{sMX+g}, {b}\ns_nop 0\nbuffer_load_dwordx4 v{vXg+g}, s[{SX}:{SX+3}], s{sXo} offen lds')
    elif op[0] == 'w':
        if op[2] == 0:
            if s == 0 and g == 0: ld_pre2(); w_setup(role)
            if s == 0: w_group(role, g)
        if op[2] == 0 or resume: a(f's_add_u32 m0, s{sMW+g}, {b + 16384}\ns_nop 0')
        a(f'buffer_load_dwordx4 v{vWg+2*g+op[2]}, s[{SW}:{SW+3}], s{sw} offen offset:{1024*op[2]} lds')
    else:
        a(f's_add_u32 m0, s{sMH+g}, {b + 16384 + 8192}\ns_nop 0\nbuffer_load_dwordx4 v{vHg+g}, s[{SW}:{SW+3}], s{sw} offen lds')
def p1_segments(role):
    seg = [[(s, op) for op in p1_list(role)] for s in range(5)]
    X = lambda s: [(s, ('x', g)) for g in range(4)]
    W = lambda s, g: [(s, ('w', g, 0)), (s, ('w', g, 1))] + ([(s, ('h', g))] if role else [])
    if role == 0:
        seg += [X(5) + W(5,0) + W(5,1) + W(5,2), X(6) + W(6,0) + W(6,1), W(6,2), W(6,3) + W(5,3)]
    else:
        seg += [X(5) + W(5,1), X(6) + W(6,1), W(6,0) + W(5,0), W(5,2) + W(6,2)]
    return seg
def p1_adv():
    a(f's_add_u32 s{sRS}, s{sRS}, 1\ns_cmp_eq_u32 s{sRS}, 7\ns_cselect_b32 s{sT}, -6, 1\ns_mul_i32 s{sT+1}, s{sT}, {64*2688}\ns_lshl_b32 s{sT}, s{sT}, 7')
    a(f's_add_u32 s{sWo}, s{sWo}, s{sT+1}\ns_add_u32 s{sXo}, s{sXo}, s{sT}')

NB = OPT['nb']; NS = 8 - NB
vO, vQ, vKV, vS = 16, 80, 112, 112 + 16 * NB
vIDX, vFL = 2, 3
vPA, vPX, vPO, vPF = 240, 244, 246, 247
vOF, vAC, vWF = 112, 176, 208
def p3_setup(br, img, exch):
    a(f'''
    s_and_b32 s94, s{sWQ}, 1
    s_lshr_b32 s95, s{sWQ}, 1
    v_bfe_u32 v12, v0, 2, 2
    v_and_b32 v13, 3, v0
    v_lshlrev_b32 v13, 3, v13
    v_bfe_u32 v14, v0, 4, 1
    v_lshl_or_b32 v13, v14, 5, v13
    s_mul_i32 s96, s95, {224*128}
    s_add_u32 s96, s96, {img}
    v_add_u32 v13, s96, v13
    v_lshrrev_b32 v14, 5, v0
    v_lshl_add_u32 v16, v14, 2, v12
    v_lshrrev_b32 v17, 1, v12
    v_xor_b32 v17, s95, v17
    v_lshl_add_u32 v17, v17, 6, v13
    v_lshl_add_u32 v{vPA}, v16, 7, v17
    v_xor_b32 v{vPA+1}, 64, v{vPA}
    v_mov_b32 v18, 0x1a0b1918
    v_mov_b32 v19, 0x180f1b1a
    v_lshlrev_b32 v16, 3, v16
    v_lshrrev_b64 v[16:17], v16, v[18:19]
    v_and_b32 v16, 255, v16
    v_bfe_u32 v17, v16, 1, 1
    v_xor_b32 v17, s95, v17
    v_lshl_add_u32 v17, v17, 6, v13
    v_lshl_add_u32 v{vPA+2}, v16, 7, v17
    v_xor_b32 v{vPA+3}, 64, v{vPA+2}
    s_lshl_b32 s96, s{sWQ}, 12
    s_add_u32 s96, s96, {exch}
    v_add_u32 v{vPX}, s96, v1
    s_xor_b32 s96, s{sWQ}, 2
    s_lshl_b32 s96, s96, 12
    s_add_u32 s96, s96, {exch}
    v_add_u32 v{vPX+1}, s96, v1
    v_and_b32 v12, 31, v0
    ''')
    if OPT['outco']:
        a(f'''
        v_bfe_u32 v13, v12, 1, 2
        v_lshlrev_b32 v13, 4, v13
        v_lshl_or_b32 v13, v14, 3, v13
        v_lshl_or_b32 v13, v12, 6, v13
        v_add_u32 v252, s96, v13
        v_lshrrev_b32 v12, 2, v0
        v_bfe_u32 v14, v0, 3, 2
        v_xor_b32 v14, v14, v0
        v_and_b32 v14, 3, v14
        ''')
    if br == 0:
        a('''
        v_and_b32 v13, 19, v12
        v_bfe_u32 v16, v12, 2, 1
        v_lshl_or_b32 v13, v16, 3, v13
        v_bfe_u32 v16, v12, 3, 1
        v_lshl_or_b32 v12, v16, 2, v13
        ''')
    a(f'''
    v_mul_u32_u24 v12, 1792, v12
    v_lshl_add_u32 v{vPO}, v14, 4, v12
    s_lshl1_add_u32 s96, s{sTB64}, s94
    s_mul_i32 s{sPO}, s96, {32*1792}
    s_lshl_b32 s98, s{sU}, 7
    s_add_u32 s{sPO}, s{sPO}, s98
    s_lshl_b32 s98, s95, 6
    s_add_u32 s{sPO}, s{sPO}, s98
    s_add_u32 s{sPO}, s{sPO}, {br*896}
    s_lshl1_add_u32 s99, s96, s95
    s_lshl_b32 s{sPL}, s99, 14
    s_add_u32 s{sPL}, s{sPL}, {OF + br*0x200000}
    ''')
    if br == 1: a(f's_lshl1_add_u32 s99, s{sTB64}, s95')
    elif OPT['wgf']: a(f's_lshr_b32 s99, s{sTB64}, 1\ns_lshl1_add_u32 s99, s99, s95')
    a(f's_lshl_b32 s99, s99, 10\ns_add_u32 s99, s99, {FOB if br else FOA}')
    a(f'v_lshlrev_b32 v{vPF}, {4 if (br == 0 and OPT["wgf"] == 2) else 7}, v0\nv_add_u32 v{vPF}, s99, v{vPF}')
def t_setup(s, role=0):
    if s == 0:
        srd(SWS, 22, WS_SIZE); srd(SDBG, 20, 256)
        if role == 0: a(f's_cmp_lg_u32 s2, {128 if OPT["rmap"] == 1 else 0}\ns_cbranch_scc1 L_noep\ns_mov_b32 s98, {EPOCH}\nbuffer_load_dwordx2 v[8:9], off, {WSR}, s98 sc1\nL_noep:')
        else: srd(SPHI, 14, 25088)
    if s == 1 and role == 0:
        a(f'''
        s_lshl3_add_u32 s98, s2, s{sW}
        s_cmp_lg_u32 s98, 4
        s_cbranch_scc1 L_notag
        v_add_u32 v8, 0x7f4a7c16, v8
        v_add_u32 v9, 0x9e3779b8, v9
        v_or_b32 v16, 1, v8
        v_or_b32 v17, 1, v9
        v_or_b32 v18, 1, v8
        v_or_b32 v19, 1, v9
        s_mov_b32 s98, {EPOCH}
        s_mov_b64 exec, 1
        buffer_store_dwordx4 v[16:19], off, s[{SDBG}:{SDBG+3}], 0 sc1
        buffer_store_dwordx4 v[16:19], off, {WSR}, s98 sc1
        s_mov_b64 exec, -1
        L_notag:
        ''')
    if s == 1 and role == 1:
        a(f'''
        s_mul_i32 s98, s{sGRP}, 3136
        s_lshl_b32 s99, s{sWQ}, 10
        s_add_u32 s98, s98, s99
        s_add_u32 m0, s99, {L_PHI}
        s_nop 0
        buffer_load_dwordx4 v1, s[{SPHI}:{SPHI+3}], s98 offen lds
        ''')
    if s == 2:
        srd(SOUT, 18, 3670016); srd(SWOA, 8, 401408)
        job_ids()
        a(f'''
        s_lshl1_add_u32 s{sH}, s{sXC}, s{sROLE}
        v_mov_b32 v{vIDX}, 0xdddddddd
        s_lshl_b32 s{sT}, s{sXC}, 4
        s_lshl2_add_u32 s94, s{sWQ}, s{sT}
        s_add_u32 s{sT}, s{sT}, s{sQB}
        v_and_b32 v12, 3, v0
        v_lshrrev_b32 v13, 2, v0
        v_add_u32 v13, 1, v13
        v_lshl_add_u32 v12, v13, 7, v12
        v_add_u32 v{vFL}, s94, v12
        s_mov_b64 exec, 0x100
        v_mov_b32 v{vFL}, s{sT}
        s_mov_b64 exec, -1
        v_lshlrev_b32 v{vFL}, 7, v{vFL}
        ''')
    if s == 3:
        p3_setup(0, L_WOA, L_TX)
    if s == 4:
        for i in range(0, 64, 2): a(f'v_mov_b64 v[{vO+i}:{vO+i+1}], 0')
for role in (1, 0):
    if role == 0: a.label('L_ldA')
    ld_head(role)
    seg = p1_segments(role)
    ops = [o for sg in seg for o in sg]
    ends = [sum(len(sg) for sg in seg[:k+1]) for k in range(len(seg))]
    pos = 0; cur = 0
    for k in range(len(seg)):
        if k == 1: t_setup(1, role)
        if OPT['womall'] >= 10 and k == OPT['womall'] - 10: srd(SWOA, 8, 401408); srd(SWOB, 16, 401408); wo_touch(14)
        tgt = min(len(ops), ends[k] + (OPT['look0'] if k == 0 else OPT['look']))
        first = True
        while pos < tgt and ops[pos][0] <= k + 1:
            st, op = ops[pos]
            if st > cur:
                if st == 6: a(f's_mov_b32 s{sW5}, s{sWo}')
                if st == 5 and OPT['qrot'] & 2:
                    a(f's_mov_b32 s{sCW}, 0')
                    for g in range(4 - role): w_group(role, g)
                p1_adv(); cur = st
            p1_op(role, st, op, first and k == 1, st < cur); first = False
            pos += 1
            if pos == ends[0]: stamp(12); t_setup(0, role)
            if pos == len(ops): a(tag_load())
        if k == 0: stamp(13)
        if k < len(seg) - 1:
            a(f's_waitcnt vmcnt({pos - ends[k] + (pos == len(ops))})')
            if k == 0: stamp(14)
            if k == 4: stamp(15)
            a('s_barrier')
            if k == 0: stamp(1)
    if role == 1: a('s_branch L_ldE')
a.label('L_ldE')
a(f'v_lshlrev_b32 v12, 2, v0\nv_add_u32 v12, {L_PAIR}, v12\nv_mov_b32 v13, 0\nds_write_b32 v12, v13')
a(f's_mov_b32 s{sSPIN}, 0x40000')
a.label('L_tagwait')
a(f'''
s_waitcnt vmcnt(0)
v_and_b32 v12, v{vTAG}, v{vTAG+1}
v_and_b32 v13, v{vTAG+2}, v{vTAG+3}
v_and_b32 v12, v12, v13
v_and_b32 v12, 1, v12
v_cmp_ne_u32 vcc, 1, v12
s_cbranch_vccz L_tagok
{tag_load()}
s_sub_u32 s{sSPIN}, s{sSPIN}, 1
s_cbranch_scc0 L_tagwait
s_waitcnt vmcnt(0)
L_tagok:
s_waitcnt lgkmcnt(0)
s_cmp_eq_u32 s{sROLE}, 0
s_cbranch_scc0 L_noc3
s_barrier
L_noc3:
''')
stamp(2)
if OPT['p1only']: a('s_branch L_fin')
sKV, sQo = 70, 71
vRW, vRR, vQX = 4, 7, 8
if OPT['ldprio']: a('s_setprio 0')
t_setup(2)
if OPT['womall'] == 3: srd(SWOB, 16, 401408); wo_touch(14)
if OPT['warm'] & 1: a(f's_mov_b64 exec, 0x1ff\nbuffer_load_dword v255, v{vFL}, {WSR}, 0 offen sc1\ns_mov_b64 exec, -1')
a(f'''
s_lshl2_add_u32 s{sKV}, s{sH}, s{sWQ}
s_lshl_b32 s{sKV}, s{sKV}, 16
s_add_u32 s{sKV}, s{sKV}, {KVF}
s_lshl4_add_u32 s{sQo}, s{sH}, s{sQB}
s_lshl2_add_u32 s{sQo}, s{sQo}, s{sWQ}
s_lshl_b32 s{sQo}, s{sQo}, 11
s_add_u32 s{sQo}, s{sQo}, {QF}
''')
a(f's_mul_i32 s80, s{sROLE}, {L_QX - L_RED}\ns_add_u32 s80, s80, {L_RED}')
for j in range(4):
    a(f's_add_u32 s{sT+2}, s{sWQ}, {j+1}\ns_and_b32 s{sT+2}, s{sT+2}, 3')
    a(f's_lshl_b32 s76, s{sT+2}, 12\ns_add_u32 s76, s76, {L_RED + (j*16384 if j < 3 else 0)}\nv_add_u32 v{vRW+j}, s76, v1')
    a(f's_lshl_b32 s76, s{sT+2}, 11\ns_add_u32 s76, s76, s80\nv_add_u32 v{vQX+j}, s76, v1')
a(f's_mov_b32 s77, {hex(f2u(-BIAS))}\ns_mov_b32 s78, {hex(QSCALE)}\ns_mov_b32 s79, 0xffff0000')
assert not OPT['dyn']
t_setup(3); t_setup(4); tag_word(12)
if OPT['tid']: a(f's_mov_b32 s{SX}, s22\ns_or_b32 s{SX+1}, s23, 0x100000\ns_mov_b32 s{SX+2}, {WS_SIZE}\ns_mov_b32 s{SX+3}, 0x800000')
if OPT['wpre']: warm('pre')
a('s_barrier')
if OPT['mprio']: a('s_setprio 1')
sKB, sKO = 72, 73
if OPT['dyn']:
    a(f'''
    s_mov_b32 s{sKB}, s{sKV}
    s_mov_b64 exec, 0x1ff
    s_mov_b32 s{sSPIN}, 0x40000
    L_first:
    buffer_load_dwordx2 v[12:13], v{vFL}, {WSR}, 0 offen sc1
    s_waitcnt vmcnt(0)
    v_cmp_eq_u64 vcc, {vr(vTAG,2)}, v[12:13]
    s_nop 0
    s_lshr_b32 s74, vcc_lo, 4
    s_and_b32 s75, s74, vcc_lo
    s_and_b32 s75, s75, 15
    s_cselect_b32 s74, s74, 0
    s_bitcmp1_b32 s74, 4
    s_cbranch_scc1 L_firstd
    s_sub_u32 s{sSPIN}, s{sSPIN}, 1
    s_cbranch_scc0 L_first
    L_firstd:
    s_mov_b32 s78, vcc_lo
    s_mov_b64 exec, -1
    s_ff1_i32_b32 s75, s75
    s_and_b32 s75, s75, 3
    s_lshl_b32 s{sKO}, s75, 14
    s_add_u32 s{sKV}, s{sKB}, s{sKO}
    ''')
elif OPT['pp1']: ppoll(vFL, 0x1ff, (232, 234, 236)[:OPT['pp1'] // 10], OPT['pp1'] % 10)
else: poll(vFL, 0x1ff, 12, sleep=OPT['psleep'])
def kv_next(kt):
    if OPT['dyn'] and (kt + 1) % 4 == 0: a(f's_add_u32 s{sKO}, s{sKO}, 16384\ns_and_b32 s{sKO}, s{sKO}, 0xffff\ns_add_u32 s{sKV}, s{sKB}, s{sKO}')
    else: a(f's_add_u32 s{sKV}, s{sKV}, 4096')
stamp(3)
if OPT['wpre']: a('; WARM pre')
kb = lambda kt: vKV + 16 * (kt % NB)
SB = lambda u: vS + 16 * (u % NS)
Q3 = vQ + 24
for c in range(2): a(f'buffer_load_dwordx4 {vr(Q3+4*c,4)}, v1, {WSR}, s{sQo} offen offset:{1024*c} sc1')
def kv_load(kt, c):
    if OPT['tid']: a(f'buffer_load_dwordx4 {vr(kb(kt)+4*c,4)}, off, s[{SX}:{SX+3}], s{sKV} offset:{1024*c} sc1')
    else: a(f'buffer_load_dwordx4 {vr(kb(kt)+4*c,4)}, v1, {WSR}, s{sKV} offen offset:{1024*c} sc1')
for kt in range(2):
    for c in range(4): kv_load(kt, c)
    kv_next(kt)
a('s_waitcnt vmcnt(6)')
a(f'{MF} {vr(vS,16)}, {vr(kb(0),4)}, {vr(Q3,4)}, 0')
a(f'{MF} {vr(vS,16)}, {vr(kb(0)+4,4)}, {vr(Q3+4,4)}, {vr(vS,16)}')
vU = vS + 16
for c in range(2):
    for i in range(4*c, 4*c+4): a(f'v_lshlrev_b32 v{vU+2*i}, 16, v{Q3+i}\nv_and_b32 v{vU+2*i+1}, s79, v{Q3+i}')
    for i in range(8*c, 8*c+8): a(f'v_mul_f32 v{vU+i}, s78, v{vU+i}')
    for i in range(4*c, 4*c+4): a(f'v_cvt_pk_bf16_f32 v{Q3+i}, v{vU+2*i}, v{vU+2*i+1}')
    if c == 0: a(f'ds_write_b128 v{vQX+3}, {vr(Q3,4)}')
a(f'v_max3_f32 v12, v{vS}, v{vS+1}, v{vS+2}\nv_max3_f32 v13, v{vS+3}, v{vS+4}, v{vS+5}')
for i in range(6, 14, 4): a(f'v_max3_f32 v12, v12, v{vS+i}, v{vS+i+1}\nv_max3_f32 v13, v13, v{vS+i+2}, v{vS+i+3}')
a(f'''
v_max3_f32 v12, v12, v{vS+14}, v{vS+15}
v_max_f32 v12, v12, v13
v_mov_b32 v13, v12
s_nop 1
v_permlane32_swap_b32 v12, v13
s_mov_b32 exec_lo, 0
v_max_f32 v12, v12, v13
v_mul_f32 v12, s78, v12
v_cvt_pk_bf16_f32 v{Q3+6}, -v12, s77
s_mov_b32 exec_lo, -1
ds_write_b128 v{vQX+3}, {vr(Q3+4,4)} offset:1024
''')
for kt in range(2, NB - 1):
    for c in range(4): kv_load(kt, c)
    kv_next(kt)
a('s_waitcnt lgkmcnt(0)')
stamp(10)
a('s_barrier')
for j in range(3):
    for c in range(2): a(f'ds_read_b128 {vr(vQ+8*j+4*c,4)}, v{vQX+j} offset:{1024*c}')
a(f'ds_write_b32 v{vRW+2}, v{vO} offset:3072')
for u in range(2):
    a(f's_waitcnt lgkmcnt({5-2*u})')
    a(f'{MF} {vr(SB(u),16)}, {vr(kb(0),4)}, {vr(vQ+8*u,4)}, 0')
    a(f'{MF} {vr(SB(u),16)}, {vr(kb(0)+4,4)}, {vr(vQ+8*u+4,4)}, {vr(SB(u),16)}')
a(f's_waitcnt vmcnt({4*(NB-2)}) lgkmcnt(0)')
if OPT['dyn']:
    assert NB == 5
    a('s_cmp_eq_u32 s78, 0x1ff\ns_cbranch_scc1 L_allready')
    poll(vFL, 0xff, 12, sleep=0)
    a.label('L_allready')
a('s_barrier\ns_nop 5')
a('s_setprio 0')
stamp(4)
a('; WARMEND')
NKT = 16; NU = 4 * NKT
def E(u, lo, hi):
    for i in range(lo, hi): a(f'v_exp_f32 v{SB(u)+i}, v{SB(u)+i}')
def redw(j, q):
    a(f'ds_write_b128 v{vRW+j}, {vr(vO+16*j+4*q,4)} offset:{1024*q}')
LAST = OPT['last']; U0 = 4 * (NKT - LAST)
def unit(u):
    if u < U0: return u >> 2, u & 3
    return NKT - LAST + (u - U0) % LAST, (u - U0) // LAST
vm = Ctr('vmcnt')
for kt in range(1, NB - 1): vm.add(kt, 4)
wq_ = []
for u in range(NU):
    kt, j = unit(u)
    u2 = u + 2
    if u >= 2 and unit(u - 2)[0] == NKT - 1: wq_ += [(unit(u - 2)[1], q) for q in range(4)]
    nw = -(-len(wq_) // max(1, min(LAST, NU - u) - (u - U0 - 1) % LAST)) if wq_ else 0
    slots = {1: (0,), 2: (0, 2), 3: (0, 1, 2)}.get(nw, (0, 1, 2, 3) if nw else ())
    def W(k):
        if OPT['wrg'] > 1:
            for _ in range(OPT['wrg'] if k == 0 else 0):
                if wq_: redw(*wq_.pop(0))
        elif k in slots and wq_: redw(*wq_.pop(0))
    E(u, 0, 2)
    if u > 0: a(f'{SM} {vr(vO+16*unit(u-1)[1],16)}, {vr(kb(unit(u-1)[0])+12,4)}, {vr(SB(u-1)+8,8)}, v{vIDX}')
    if u < U0 and kt + NB - 1 < NKT and not OPT['nokv'] and j % OPT['ldg'] == 0:
        for c in range(j, j + OPT['ldg']): kv_load(kt + NB - 1, c); vm.add(kt + NB - 1)
    W(0)
    E(u, 2, 6)
    if u2 < NU: a(f'{MF} {vr(SB(u2),16)}, {vr(kb(unit(u2)[0]),4)}, {vr(vQ+8*unit(u2)[1],4)}, 0')
    if u < U0 and j == 3 and kt + NB < NKT: kv_next(kt + NB - 1)
    if u == NU - OPT['done']: a(f'ds_write_b32 v{vRW+2}, v{vIDX} offset:3072')
    W(1)
    E(u, 6, 10)
    a(f'{SM} {vr(vO+16*j,16)}, {vr(kb(kt)+8,4)}, {vr(SB(u),8)}, v{vIDX}')
    W(2)
    E(u, 10, 14)
    if u2 < NU: a(f'{MF} {vr(SB(u2),16)}, {vr(kb(unit(u2)[0])+4,4)}, {vr(vQ+8*unit(u2)[1]+4,4)}, {vr(SB(u2),16)}')
    if u + 3 < NU: vm.wait(unit(u + 3)[0])
    W(3)
    E(u, 14, 16)
if LAST == 1: wq_ += [(2, q) for q in range(4)]
assert OPT['done'] > LAST
if len(wq_) < 2: a('s_nop 1')
for w in wq_[:2]: redw(*w)
a(f'{SM} {vr(vO+48,16)}, {vr(kb(NKT-1)+12,4)}, {vr(SB(NU-1)+8,8)}, v{vIDX}')
for w in wq_[2:]: redw(*w)
sOo, sFo = 70, 71
if OPT['wtail']: a('; WARM tail')
a(f'''
s_lshl2_add_u32 s{sT}, s{sQB}, s{sWQ}
s_lshl4_add_u32 s{sT}, s{sT}, s{sH}
s_lshl_b32 s{sOo}, s{sT}, 11
s_add_u32 s{sOo}, s{sOo}, {OF}
''')
if OPT['wgf'] == 0: a(f's_lshl_b32 s{sFo}, s{sT}, 7')
if OPT['wgf'] == 1: a(f's_lshl4_add_u32 s{sFo}, s{sQB}, s{sH}\ns_lshl_b32 s{sFo}, s{sFo}, 7')
if OPT['wgf'] == 2: a(f's_lshr_b32 s{sT}, s{sH}, 3\ns_lshl1_add_u32 s{sT}, s{sQB}, s{sT}\ns_lshl_b32 s{sT}, s{sT}, 10\ns_and_b32 s{sFo}, s{sH}, 7\ns_lshl4_add_u32 s{sFo}, s{sFo}, s{sT}')
a(f'''
s_add_u32 s{sFo}, s{sFo}, {FOA}
s_mov_b32 s72, {hex(f2u(2.0**120))}
s_mov_b32 s73, {hex(f2u(2.0**(-BIAS-4)))}
s_mov_b32 s74, {hex(f2u(2.0**-106))}
s_waitcnt lgkmcnt(0)
''')
stamp(5)
if OPT['prio']: a('s_setprio 2')
if OPT['eflag'] == 4: setflag(sFo)
a('s_barrier')
stamp(11)
if OPT['eflag'] == 3:
    if OPT['wgf']: a(f's_cmp_eq_u32 s{sWQ}, 0\ns_cbranch_scc0 L_nofl')
    setflag(sFo, 1 if OPT['wgf'] == 2 else 0xff)
    a.label('L_nofl')
vA = vO + 48
vRD = 128 if NB == 5 else 112
vOP = 208
P3POLL = f's_mov_b64 exec, 0xff\nbuffer_load_dwordx2 v[14:15], v{vPF}, {WSR}, 0 offen sc1\ns_mov_b64 exec, -1'
QO = (3, 0, 1, 2)
for q in QO:
    for j in range(3): a(f'ds_read_b128 {vr(vRD+16*j+4*q,4)}, v{vRR} offset:{j*16384+q*1024}')
def rowsum():
    a(f'''
    v_mov_b32 v8, v{vA+12}
    v_mov_b32 v9, v{vA+12}
    s_nop 1
    v_permlane32_swap_b32 v8, v9
    v_rcp_f32 v10, v9
    ''')
for n, q in enumerate(QO):
    for j in range(3):
        if j != 1: a(f's_waitcnt lgkmcnt({(10 if j == 0 else 9)-3*n})')
        for e in (0, 2): a(f'v_pk_add_f32 {vr(vA+4*q+e,2)}, {vr(vA+4*q+e,2)}, {vr(vRD+16*j+4*q+e,2)}')
    if n == 0: rowsum()
a(f'v_mov_b64 v[12:13], 0\nds_write_b64 v{vRR}, v[12:13] offset:32768')
if OPT['eflag'] == 2: setflag(sFo)
a(f'v_maximum3_f32 v8, |v{vA}|, |v{vA+1}|, |v{vA+2}|')
for i in range(3, 11, 2): a(f'v_maximum3_f32 v8, |v{vA+i}|, |v{vA+i+1}|, v8')
a('v_cmp_ngt_f32 s[78:79], v8, s74')
for i in range(11, 15, 2): a(f'v_maximum3_f32 v8, |v{vA+i}|, |v{vA+i+1}|, v8')
a(f'v_maximum3_f32 v8, |v{vA+15}|, v9, v8')
a('v_cmp_nlt_f32 vcc, v8, s72\nv_cmp_ngt_f32 s[76:77], v9, s73')
def scale_pack():
    for i in range(0, 16, 2): a(f'v_pk_mul_f32 {vr(vA+i,2)}, {vr(vA+i,2)}, v[10:11] op_sel_hi:[1,0]')
    for i in (6, 7, 0, 1, 2, 3, 4, 5): a(f'v_cvt_pk_bf16_f32 v{vOP+i}, v{vA+2*i}, v{vA+2*i+1}')
    tag_pack(vOP)
scale_pack()
a('s_or_b64 vcc, vcc, s[76:77]\ns_or_b64 vcc, vcc, s[78:79]')
if OPT['force_fb']: a('s_mov_b64 vcc, 1')
a('s_cbranch_vccnz L_fallback')
a.label('L_ostore')
stamp(12)
if OPT['badtag']: setflag(sFo); a('s_sleep 60')
if OPT['eflag'] == 1: setflag(sFo)
for c in range(2):
    a(f'buffer_store_dwordx4 {vr(vOP+4*c,4)}, v1, {WSR}, s{sOo} offen offset:{1024*c} sc1')
    if OPT['badtag']: a('s_sleep 30')
if not OPT['badtag'] and not OPT['eflag']: setflag(sFo)
a('s_waitcnt lgkmcnt(0)\ns_barrier')
stamp(6)
a(f's_cmp_ge_u32 s{sI}, 28\ns_cbranch_scc1 L_fin')
sPend, sRdy, sNew, sLd, sHook, sPLh = 70, 71, 72, 73, 74, 76
def p3_sync(br):
    a(f'''
    s_lshl_b32 s82, s{sWQ}, 12
    s_add_u32 s82, s82, {L_SY + 4*br}
    v_mov_b32 v10, s82
    v_xor_b32 v11, 8192, v10
    ''')
def p3_bases():
    a(f's_mov_b32 s{sPLh}, s{sPL}')
    for i in range(1, 4): a(f's_add_u32 s{sPLh+i}, s{sPL}, {4096*i}')
def o_loads(h):
    for c in range(2): a(f'buffer_load_dwordx4 {vr(vOF+8*h+4*c,4)}, v1, {WSR}, s{sPLh+(h>>1)} offen offset:{2048*(h&1)+1024*c} sc1')
def wo_reads(h, c, W):
    for aa in (1, 0):
        for jj in range(2):
            if c and jj: a(f'ds_read_b64_tr_b16 {vr(W+4*aa+2*jj,2)}, v{vPA+2+aa} offset:{28*h*128}')
            else: a(f'ds_read_b64_tr_b16 {vr(W+4*aa+2*jj,2)}, v{vPA+aa} offset:{(28*h+16*c+8*jj)*128}')
p3_bases(); p3_sync(0)
a(f's_setprio {OPT["p3prio"]}')
a.label('L_p3_wait')
if OPT['opf']:
    a(f'''
    v_lshrrev_b32 v12, 3, v0
    v_mul_u32_u24 v12, 7, v12
    v_add_u32 v12, s{sU}, v12
    v_min_u32 v12, 15, v12
    v_and_b32 v13, 7, v0
    v_lshl_add_u32 v12, v13, 4, v12
    v_lshlrev_b32 v13, 7, v12
    s_movk_i32 s{sPend}, 0xff
    s_mov_b32 s{sSPIN}, 0x40000
    s_mov_b32 exec_hi, 0
    L_pw:
    s_movk_i32 exec_lo, 0xff
    buffer_load_dwordx2 v[14:15], v{vPF}, {WSR}, 0 offen sc1
    s_waitcnt vmcnt(0)
    v_cmp_ne_u64 vcc, {vr(vTAG,2)}, v[14:15]
    s_cbranch_vccz L_pwd
    s_andn2_b32 s{sRdy}, s{sPend}, vcc_lo
    s_cbranch_scc0 L_pwn
    s_mov_b32 s{sPend}, vcc_lo
    s_mul_i32 exec_lo, s{sRdy}, 0x10101
    buffer_load_dword v255, v13, {WSR}, s{sPL} offen sc1
    L_pwn:
    s_sub_u32 s{sSPIN}, s{sSPIN}, 1
    s_cbranch_scc0 L_pw
    L_pwd:
    s_mov_b64 exec, -1
    ''')
elif OPT['pp']: ppoll(vPF, 0xff, (4, 6, 8)[:OPT['pp'] // 10], OPT['pp'] % 10)
else: poll(vPF, 0xff, 14, sleep=OPT['psleep'])
stamp(7)
a(f's_mov_b32 s{sSPIN}, 0x40000\nL_p3_load:')
for h in range(8): o_loads(h)
a.label('L_p3')
if OPT['stamp'] == 3: stamp(13)
W4 = lambda n: vWF + 8 * (n & 3)
wo_reads(0, 0, W4(0)); wo_reads(0, 1, W4(1))
for n in range(16):
    t = vOF + 4 * n + 3
    if OPT['rtry']:
        if n % 2 == 0:
            a(f's_waitcnt vmcnt({14-n})\nL_pr{n//2}:\nv_xor_b32 v{t}, v{t}, v{vTW}\nv_xor_b32 v{t+4}, v{t+4}, v{vTW}')
            a(f'v_or_b32 v12, v{t}, v{t+4}\nv_cmp_lt_u32 vcc, 0xffff, v12\ns_cbranch_vccnz L_re{n//2}')
        a(f's_waitcnt lgkmcnt({4 if n < 15 else 0})')
    else:
        a(f's_waitcnt vmcnt({15-n})\nv_xor_b32 v{t}, v{t}, v{vTW}')
        a(f'v_or_b32 v12, v{t}, v{12 if n else t}\ns_waitcnt lgkmcnt({4 if n < 15 else 0})')
    a(f'{MF} {vr(vAC+16,16)}, {vr(W4(n)+4,4)}, {vr(vOF+4*n,4)}, {vr(vAC+16,16) if n else 0}')
    if n < 14: wo_reads((n + 2) >> 1, n & 1, W4(n + 2))
    if n == 15: a('s_nop 0' if OPT['rtry'] else 'v_cmp_lt_u32 vcc, 0xffff, v12')
    a(f'{MF} {vr(vAC,16)}, {vr(W4(n),4)}, {vr(vOF+4*n,4)}, {vr(vAC,16) if n else 0}')
a(f'''
{'s_nop 0' if OPT['rtry'] else 's_cbranch_vccnz L_p3_again'}
L_p3_fin:
v_xor_b32 v12, 16, v252
v_xor_b32 v13, 32, v252
v_xor_b32 v14, 48, v252
s_add_u32 s{sPL}, s{sPO}, {16*1792}
s_mov_b32 s{sSPIN}, 0x1000000
s_nop 3
''')
if OPT['stamp'] == 3: stamp(14)
for q in range(4): a(f'ds_write_b128 v{vPX}, {vr(vAC+16+4*q,4)} offset:{1024*q}')
a('ds_write_b32 v10, v10\nL_p3_x:\nds_read_b32 v15, v11')
for q in range(4): a(f'ds_read_b128 {vr(vOF+4*q,4)}, v{vPX+1} offset:{1024*q}')
a(f'''
s_waitcnt lgkmcnt(4)
v_cmp_ne_u32 vcc, 0, v15
s_cbranch_vccnz L_p3_xd
s_waitcnt lgkmcnt(0)
s_sub_u32 s{sSPIN}, s{sSPIN}, 1
s_cbranch_scc0 L_p3_x
L_p3_xd:
''')
if OPT['stamp'] == 3: stamp(15)
osc = ('', ' sc1', ' nt', ' sc1 nt')[OPT['outsc']]
for q in range(4):
    a(f's_waitcnt lgkmcnt({3-q})')
    for e in range(4): a(f'v_add_f32 v{vAC+4*q+e}, v{vAC+4*q+e}, v{vOF+4*q+e}')
    for i in range(2*q, 2*q+2): a(f'v_cvt_pk_bf16_f32 v{vWF+i}, v{vAC+2*i}, v{vAC+2*i+1}')
for q in range(4): a(f'ds_write_b64 v{(252, 12, 13, 14)[q]}, {vr(vWF+2*q,2)}')
a(f'''
ds_read_b128 {vr(vWF+8,4)}, v{vPX+1}
ds_read_b128 {vr(vWF+12,4)}, v{vPX+1} offset:1024
''')
if OPT['gdelay']:
    a(f'''
    s_cmp_ge_u32 s{sW}, 4
    s_cbranch_scc1 L_gst
    v_and_b32 v9, -8, v10
    s_mov_b32 s{sSPIN}, 0x100000
    L_gw:
    ds_read_b32 v15, v9
    s_waitcnt lgkmcnt(0)
    v_cmp_ne_u32 vcc, 0, v15
    s_cbranch_vccnz L_gst
    s_sleep 1
    s_sub_u32 s{sSPIN}, s{sSPIN}, 1
    s_cbranch_scc0 L_gw
    L_gst:
    ''')
a(f'''
s_waitcnt lgkmcnt(1)
buffer_store_dwordx4 {vr(vWF+8,4)}, v{vPO}, s[{SOUT}:{SOUT+3}], s{sPO} offen{osc}
s_waitcnt lgkmcnt(0)
buffer_store_dwordx4 {vr(vWF+12,4)}, v{vPO}, s[{SOUT}:{SOUT+3}], s{sPL} offen{osc}
''')
a.label('L_fin')
if OPT['stamp']:
    stamp(8)
    a('s_waitcnt vmcnt(0)')
    stamp(9)
    a(f's_lshl3_add_u32 s88, s2, s{sW}\ns_lshl_b32 s88, s88, 6\ns_add_u32 s88, s88, {STAMP}')
    a(f's_mov_b64 exec, 0xffff\nv_lshlrev_b32 v3, 2, v0\nbuffer_store_dword v254, v3, {WSR}, s88 offen\ns_mov_b64 exec, -1')
    if OPT['probe'] >= 0:
        a(f's_cmp_{"lt" if OPT["probeT"] else "ge"}_u32 s{sW}, 4\ns_cbranch_scc1 L_end')
        a(f's_cmp_lt_u32 s2, {OPT["pwlo"]}\ns_cbranch_scc1 L_end\ns_cmp_ge_u32 s2, {OPT["pwhi"]}\ns_cbranch_scc1 L_end')
        a(f'v_readlane_b32 s80, v254, {OPT["probe"]}\ns_nop 3\ns_cmp_eq_u32 s80, 0\ns_cbranch_scc1 L_end\ns_add_u32 s80, s80, 6000')
        a('L_probe:\ns_sleep 2\ns_memrealtime s[88:89]\ns_waitcnt lgkmcnt(0)\ns_sub_u32 s81, s88, s80\ns_cmp_lt_i32 s81, 0\ns_cbranch_scc1 L_probe')
a.label('L_end')
a('s_endpgm')
if OPT['rtry']:
    for h in range(8):
        a(f'L_re{h}:\ns_sub_u32 s{sSPIN}, s{sSPIN}, 1\ns_cbranch_scc1 L_giveup')
        o_loads(h)
        a(f's_waitcnt vmcnt(0)\ns_branch L_pr{h}')
    a('L_giveup:\ns_waitcnt vmcnt(0) lgkmcnt(0)\ns_branch L_p3_fin')
a(f'''
L_p3_again:
s_sub_u32 s{sSPIN}, s{sSPIN}, 1
s_cbranch_scc0 L_p3_load
s_branch L_p3_fin
''')

a.label('L_G')
if OPT['ipad'] == 1: ipad()
if OPT['ipad']: a('L_wipr:\ns_mov_b64 exec, -1')
ids()
vXR, vXR2, vWR, vWD, vONE = 4, 8, 208, 224, 228
vACC, vFR, vXL, vWL, vPK, vPH = 16, 112, 152, 184, 112, 232
sTH, sSG, sHB = 70, 71, 72
a(f'''
s_lshr_b32 s{sTH}, s{sWQ}, 1
s_and_b32 s{sSG}, s{sWQ}, 1
s_getpc_b64 s[76:77]
L_pc:
s_sub_u32 s76, s76, L_pc-{NAME}_kernel
s_subb_u32 s77, s77, 0
s_lshl2_add_u32 s{sT}, s{sI}, s{sWQ}
s_mulk_i32 s{sT}, 384
v_lshlrev_b32 v2, 7, v0
v_add_u32 v2, s{sT}, v2
v_min_u32 v2, L_code_end-{NAME}_kernel-4, v2
s_mov_b64 exec, 7
global_load_dword v255, v2, s[76:77]
s_mov_b64 exec, -1
v_and_b32 v14, 31, v0
v_lshrrev_b32 v15, 5, v0
v_bfe_u32 v2, v14, 1, 3
v_xor_b32 v2, v2, v15
v_lshlrev_b32 v2, 4, v2
v_lshl_or_b32 v2, v14, 7, v2
s_lshl_b32 s{sT}, s{sTH}, 13
s_add_u32 s{sT}, s{sT}, {L_RING}
v_add_u32 v{vXR}, s{sT}, v2
v_xor_b32 v{vXR+1}, 32, v{vXR}
v_xor_b32 v{vXR+2}, 64, v{vXR}
v_xor_b32 v{vXR+3}, 96, v{vXR}
v_add_u32 v{vXR2}, {2*STG}, v{vXR}
v_add_u32 v{vXR2+1}, {2*STG}, v{vXR+1}
v_add_u32 v{vXR2+2}, {2*STG}, v{vXR+2}
v_add_u32 v{vXR2+3}, {2*STG}, v{vXR+3}
v_bfe_u32 v2, v0, 2, 2
v_and_b32 v12, 3, v0
v_lshlrev_b32 v12, 3, v12
v_bfe_u32 v13, v0, 4, 1
v_lshl_or_b32 v3, v13, 5, v12
v_lshrrev_b32 v13, 1, v2
v_lshlrev_b32 v13, 6, v13
v_lshl_add_u32 v12, v15, 3, v2
v_lshlrev_b32 v12, 7, v12
v_add_u32 v12, {L_RING + 16384}, v12
''')
if OPT['zpad']:
    a('s_mov_b32 exec_lo, 0x88880000\ns_mov_b32 exec_hi, 0x88880000\nv_add_u32 v12, 0x30000, v12\ns_mov_b64 exec, -1')
a(f'''
s_mul_i32 s75, s{sSG}, 56
s_waitcnt lgkmcnt(0)
''')
if OPT['stamp']: a('v_writelane_b32 v254, s86, 0')
stamp(12)
srd(SWS, 22, WS_SIZE); srd(SOUT, 18, 3670016); srd(SWOA, 8, 401408); srd(SWOB, 16, 401408); srd(SDBG, 20, 256)
if OPT['tlb']:
    a(f'''
    v_lshlrev_b32 v14, {OPT['tlb']}, v0
    s_lshl_b32 s76, s{sWQ}, 22
    s_mov_b64 exec, {(1 << (1 << (22 - OPT['tlb']))) - 1 if OPT['tlb'] > 17 else -1}
    buffer_load_dword v255, v14, {WSR}, s76 offen
    buffer_load_dword v255, v14, s[{SOUT}:{SOUT+3}], s76 offen
    s_mov_b64 exec, -1
    ''')
if OPT['womall'] == 1: wo_touch(14)
job_ids()
a('v_mov_b32 v20, v12\nv_mov_b32 v21, v13')
p3_setup(1, L_WOB, L_GX)
a(f'''
v_mov_b32 v12, v20
v_mov_b32 v13, v21
v_lshrrev_b32 v16, 3, v0
v_and_b32 v17, 7, v0
v_bfe_u32 v18, v0, 4, 1
v_lshlrev_b32 v18, 2, v18
v_xor_b32 v17, v17, v18
v_mul_u32_u24 v16, 896, v16
v_lshl_add_u32 v{vWD}, v17, 4, v16
v_add_u32 v{vWD+1}, 6144, v{vWD}
v_add_u32 v{vWD+2}, 12288, v{vWD}
v_add_u32 v{vWD+3}, 18432, v{vWD}
v_mov_b64 v[{vONE}:{vONE+1}], 0
s_mov_b32 exec_lo, 0x10000000
s_mov_b32 exec_hi, 0x10000000
v_mov_b32 v{vONE}, 0x3f803f80
v_mov_b32 v{vONE+1}, 0x3f803f80
s_mov_b64 exec, -1
s_mov_b32 s100, 0xf0000000
s_mov_b32 s101, 0xf0000000
''')
a(f'''
s_lshl1_add_u32 s{sHB}, s{sGRP}, s{sSG}
s_cmp_eq_u32 s{sROLE}, 1
s_cbranch_scc1 L_GB
s_mul_i32 s76, s{sGRP}, 336
s_and_b32 s76, s76, 127
s_add_u32 s76, s76, s75
''')
for j in range(3):
    a(f'''
    v_add_u32 v14, s76, v3
    v_lshrrev_b32 v15, 7, v14
    v_and_b32 v14, 127, v14
    v_xor_b32 v14, v14, v13
    v_lshl_add_u32 v14, v15, 13, v14
    v_add_u32 v{vWR+j}, v12, v14
    v_add_u32 v{vWR+3+j}, {2*STG}, v{vWR+j}
    s_add_u32 s76, s76, 112
    ''')
a(f'''
v_and_b32 v2, 51, v0
v_bfe_u32 v3, v0, 2, 1
v_lshl_or_b32 v2, v3, 3, v2
v_bfe_u32 v3, v0, 3, 1
v_lshl_or_b32 v2, v3, 2, v2
v_lshlrev_b32 v14, 4, v2
s_mul_i32 s73, s{sGRP}, 6
s_add_u32 s73, s73, s{sSG}
s_lshl1_add_u32 s74, s{sTB}, s{sTH}
s_lshl_b32 s74, s74, 1
''')
for j in range(3):
    a(f'''
    s_add_u32 s82, s73, {2*j}
    s_and_b32 s83, s82, 15
    s_lshl_b32 s83, s83, 6
    s_add_u32 s83, s83, s74
    s_cmp_lt_u32 s82, 16
    s_cselect_b32 s97, 11, 12
    s_cselect_b32 s98, {QF >> 20}, {KVF >> 20}
    s_cselect_b32 s{94+j}, 0, 0x3f803f80
    s_lshl_b32 s83, s83, s97
    s_lshl_b32 s98, s98, 20
    s_add_u32 s{76+2*j}, s83, s98
    s_lshl_b32 s97, 1, s97
    s_add_u32 s{77+2*j}, s97, s{76+2*j}
    ''')
a(f'''
s_cmp_ge_u32 s{sGRP}, 6
s_cbranch_scc1 L_G_NNN
s_cmp_eq_u32 s{sGRP}, 5
s_cbranch_scc1 L_G_TNN
''')
vPI = 14
acc = lambda tt, j: vACC + 16 * (2 * j + tt)
xf = lambda b, tt: vFR + 20 * b + 4 * tt
wf = lambda b, j: vFR + 20 * b + 8 + 4 * j
def gemm(pat, order, fill, extra=None, tail_reads=None):
    lg = Ctr('lgkmcnt')
    isB = pat == 'TTN'
    def rd_x(n, tt, dst):
        if OPT['nolds']: return
        ks, k = n & 3, stg_slot(n >> 2)
        a(f'ds_read_b128 {vr(dst,4)}, v{(vXR2 if k == 2 else vXR)+ks} offset:{(k & 1) * STG + tt*4096}'); lg.add(('x', n))
    def rd_w(n, j, dst):
        if OPT['nolds']: return
        ks, k = n & 3, stg_slot(n >> 2)
        for jj in range(2):
            if isB: ad, off = vWR + 2 * k + (ks >> 1), j*12288 + (ks & 1)*2048 + jj*512
            else: ad, off = vWR + (3 if k == 2 else 0) + j, (k & 1) * STG + ks*2048 + jj*512
            a(f'ds_read_b64_tr_b16 {vr(dst+2*jj,2)}, v{ad} offset:{off}'); lg.add(('w', n, j))
    def mf(n, j, tt, X, W):
        A, B = (W, X) if pat[j] == 'T' else (X, W)
        if OPT['nomfma']: return
        a(f'{MF} {vr(acc(tt,j),16)}, {vr(A,4)}, {vr(B,4)}, {vr(acc(tt,j),16) if n else 0}')
    xl = lambda ks, tt: vXL + 8 * ks + 4 * tt
    wl = lambda p: vWL + 4 * (p % 4)
    if isB: blocks = [(1, 5, 1, 0), (1, 6, 1, 1), (0, 6, 0, 1), (0, 5, 1, 0), (2, 5, 0, 2), (2, 6, 1, 0)]; NMAIN = 20
    else: blocks = [(0, 6, 1, 0), (1, 6, 0, 1), (2, 6, 0, 2), (2, 5, 1, 0)]; NMAIN = 24
    pair = lambda p: (blocks[p >> 2][0], 4 * blocks[p >> 2][1] + (p & 3))
    def tail_rd(p):
        if p >= 4 * len(blocks): return
        j, n = pair(p)
        if p & 3 == 0 and blocks[p >> 2][3]:
            a('s_barrier')
            if blocks[p >> 2][3] == 2: a(tag_load())
        if blocks[p >> 2][2]: rd_x(n, 0, xl(p & 3, 0)); rd_x(n, 1, xl(p & 3, 1))
        rd_w(n, j, wl(p))
    stamp(13)
    a('s_barrier')
    stamp(1)
    rd_x(0, 0, xf(0,0)); rd_x(0, 1, xf(0,1))
    for j in order: rd_w(0, j, wf(0,j))
    for n in range(NMAIN):
        b = n & 1; nb = 1 - b
        js = order if n < 20 else order[:2]
        njs = order if n + 1 < 20 else order[:2]
        rds = [lambda: (rd_x(n+1, 0, xf(nb,0)), rd_x(n+1, 1, xf(nb,1)))] + [(lambda j=j: rd_w(n+1, j, wf(nb,j))) for j in njs]
        if n == NMAIN - 1: rds = [lambda: tail_rd(0), lambda: tail_rd(1)]
        bpos = (len(js) * 2 - OPT['bafter']) if (n & 3) == 3 else 1
        m = 0
        for j in js:
            lg.wait(('x', n), ('w', n, j))
            for tt in range(2):
                mf(n, j, tt, xf(b,tt), wf(b,j)); m += 1
                if m == bpos and (n & 3) == 3:
                    lg.wait(('w', n, js[-1])); a('s_barrier')
                if m >= bpos and rds:
                    rds.pop(0)()
                    if len(rds) > len(js) * 2 - m: rds.pop(0)()
        assert not rds
    q = []
    def drain(k):
        n = 0
        while q and n < k:
            g = q.pop(0); a(g); n += len([l for l in g.strip().split('\n') if l.strip()])
    def half(p, tt):
        j, n = pair(p)
        if tt == 0: lg.wait(('x', n), ('w', n, j))
        mf(n, j, tt, xl(p & 3, tt), wl(p))
    for p in range(8 if isB else 16):
        half(p, 0)
        if not (isB and p >= 6): tail_rd(p + 2)
        if tail_reads and p in tail_reads: tail_reads[p](lg)
        drain(OPT['nfill'] - 1)
        half(p, 1)
        drain(OPT['nfill'])
        if extra and p in extra: drain(999); extra[p](lg)
        if not OPT['p1only']: q += fill.get(p, [])
    stamp(2)
    if OPT['p1only']: a('s_branch L_fin')
    drain(999)
    return lg, half, tail_rd
def epiA(j, typ):
    g = ['s_nop 6' if j < 2 else 's_nop 10']
    P = vPK + 16 * (j & 1)
    for tt in range(2):
        A = acc(tt, j); p = P + 8 * tt
        for c in range(2):
            for i in range(4*c, 4*c+4): g.append(f'v_cvt_pk_bf16_f32 v{p+i}, v{A+2*i}, v{A+2*i+1}')
            if typ == 'T':
                if c: g.append(f's_mov_b32 exec_lo, 0\nv_mov_b32 v{p+6}, s{94+j}\nv_mov_b32 v{p+7}, 0\ns_mov_b32 exec_lo, -1')
                g.append(f'buffer_store_dwordx4 {vr(p+4*c,4)}, v{vPI}, {WSR}, s{76+2*j+tt} offen offset:{1024*c} sc1')
            else:
                g.append(f's_mov_b64 exec, s[100:101]\nv_mov_b64 v[{p+4*c}:{p+4*c+1}], v[{vONE}:{vONE+1}]\nv_mov_b64 v[{p+4*c+2}:{p+4*c+3}], v[{vONE}:{vONE+1}]\ns_mov_b64 exec, -1')
                g.append(f'buffer_store_dwordx4 {vr(p+4*c,4)}, v1, {WSR}, s{76+2*j+tt} offen offset:{2048+1024*c} sc1')
    if OPT['stamp'] == 2:
        st = lambda i: f's_memrealtime s[88:89]\ns_waitcnt lgkmcnt(0)\nv_writelane_b32 v254, s88, {i}'
        k = [i for i, x in enumerate(g) if 'buffer_store' in x]
        if j == 0: g.insert(k[0], st(6))
        g.append(st((10, 15, 12)[j]))
    return g
for pat in ('TTT', 'TNN', 'NNN'):
    a.label('L_G_' + pat)
    gemm(pat, (0, 1, 2), {3: epiA(0, pat[0]), 7: epiA(1, pat[1]), 15: epiA(2, pat[2])})
    if pat != 'NNN': a('s_branch L_GA_done')
def phq(op):
    a(f's_lshl4_add_u32 s80, s{sGRP}, s{sTB}\ns_lshl2_add_u32 s80, s80, s{sWQ}\ns_lshl_b32 s80, s80, 13\ns_add_u32 s80, s80, {PHQ}\ns_add_u32 s81, s80, 4096')
    for n in range(8):
        if op == 'load' and n % 2 == 0: a('s_waitcnt vmcnt(2)')
        a(f'buffer_{op}_dwordx4 {vr(acc(0,0)+4*n,4)}, v1, {WSR}, s{80+n//4} offen offset:{1024*(n%4)} sc1')
def ob_rows():
    vY = 112
    a(f'''
    s_lshl_b32 s79, s{sHB}, 10
    s_add_u32 s79, s79, {FKS}
    v_lshlrev_b32 v15, 7, v0
    v_add_u32 v15, s79, v15
    s_lshl_b32 s78, s{sHB}, 12
    s_add_u32 s78, s78, {KVS}
    ''')
    poll(15, 0xff, 2, sleep=OPT['gsleep'])
    stamp(15)
    for q in range(4): a(f'buffer_load_dwordx4 {vr(48+4*q,4)}, v1, {WSR}, s78 offen offset:{1024*q} sc1')
    if OPT['oba']: phq('load')
    a(f'''
    s_lshl1_add_u32 s83, s{sTB}, s{sTH}
    s_lshl_b32 s78, s83, 5
    s_add_u32 s78, s78, s{sHB}
    s_lshl_b32 s78, s78, 11
    s_add_u32 s78, s78, {OF + 0x200000}
    s_add_u32 s79, s78, 32768
    s_lshl4_add_u32 s82, s83, s{sHB}
    s_lshl_b32 s82, s82, 7
    s_add_u32 s82, s82, {FOB}
    s_waitcnt vmcnt(0)
    ''')
    for tt in range(2):
        for q in range(4):
            a(f'{MF} {vr(vY+16*tt,16)}, {vr(48+4*q,4)}, {vr(acc(tt,0)+4*q,4)}, {vr(vY+16*tt,16) if q else 0}')
    a('s_nop 7')
    for tt in range(2):
        N = vY + 16 * tt; p = 64 + 8 * tt
        a(f'''
        v_mov_b32 v4, v{N+12}
        v_mov_b32 v5, v{N+12}
        s_nop 1
        v_permlane32_swap_b32 v4, v5
        v_fmac_f32 v5, {hex(f2u(1e-6))}, v{230+tt}
        v_rcp_f32 v4, v5
        s_nop 0
        ''')
        for i in range(16): a(f'v_mul_f32 v{N+i}, v{N+i}, v4')
        for i in (6, 7, 0, 1, 2, 3, 4, 5): a(f'v_cvt_pk_bf16_f32 v{p+i}, v{N+2*i}, v{N+2*i+1}')
        tag_pack(p)
        for c in range(2): a(f'buffer_store_dwordx4 {vr(p+4*c,4)}, v1, {WSR}, s{78+tt} offen offset:{1024*c} sc1')
    if OPT['ack']: a('s_waitcnt vmcnt(0)')
    setflag(82)
a.label('L_GA_done')
a(f'''
s_mul_i32 s76, s{sGRP}, 48
s_add_u32 s76, s76, s{sTB}
s_lshl_b32 s76, s76, 7
v_lshrrev_b32 v2, 3, v0
v_and_b32 v3, 7, v0
v_lshlrev_b32 v3, 4, v3
v_lshl_add_u32 v2, v2, 11, v3
s_cmp_lg_u32 s{sW}, 0
s_waitcnt vmcnt(0)
s_barrier
s_cbranch_scc1 L_GA_nf
s_mov_b64 exec, 0xffffff
buffer_store_dwordx4 {vr(vTAG,4)}, v2, {WSR}, s76 offen sc1
s_mov_b64 exec, -1
''')
a.label('L_GA_nf')
stamp(3)
def wo_part(lo, hi, pace=None):
    if lo >= hi or OPT['nowo']: return
    if pace is None: pace = OPT['pace']
    if lo == 0 and OPT['womall'] == 2: wo_touch(14); a('s_waitcnt vmcnt(0)')
    L = a.newlabel('L_nowo')
    a(f's_cmp_ge_u32 s{sI}, 28\ns_cbranch_scc1 {L}')
    a(f's_lshl_b32 s96, s{sU}, 7\ns_mul_i32 s94, s{sWQ}, {14*8*896}\ns_add_u32 s96, s96, s94\ns_mul_i32 s95, s{sWQ}, {14*1024}')
    for k in range(lo, hi):
        srdw, img, n = (SWOB, L_WOB, k) if k < 14 else (SWOA, L_WOA, k - 14)
        if n % 4 == 0 or k == lo:
            a(f's_add_u32 m0, s95, {img + (n & ~3)*1024}\ns_add_u32 s94, s96, {(n & ~3)*8*896}')
        a(f'buffer_load_dwordx4 v{vWD+n%4}, s[{srdw}:{srdw+3}], s94 offen offset:{1024*(n%4)} lds')
        a(f's_waitcnt vmcnt({pace})')
    a.label(L)
tag_word(2)
wo_part(0, OPT['woe'], OPT['pace0'])
stamp(15)
a('s_barrier\ns_barrier')
if OPT['gidle']: a('s_branch L_fin')
WA1 = min(28, OPT['woe'] + OPT['wo1'])
wo_part(OPT['woe'], WA1)
a(f's_cmp_lg_u32 s{sW}, 0\ns_cbranch_scc1 L_GA_wo')
a(f'''
s_lshl4_add_u32 s76, s{sGRP}, s{sTB}
s_lshr_b32 s77, s76, 2
s_lshl_b32 s78, s77, 11
s_add_u32 s79, s78, {FKV}
v_lshlrev_b32 v15, 7, v0
v_add_u32 v15, s79, v15
s_lshl_b32 s82, s76, 7
s_add_u32 s82, s82, {FKS}
s_lshl_b32 s78, s77, 16
s_and_b32 s79, s76, 3
s_lshl_b32 s79, s79, 10
s_add_u32 s78, s78, s79
s_add_u32 s78, s78, {PART}
''')
poll(15, 0xffff, 2, sleep=OPT['gsleep'])
stamp(4)
for p in range(16):
    a(f'buffer_load_dwordx4 {vr(16+4*p,4)}, v1, {WSR}, s78 offen sc1')
    if p < 15: a('s_add_u32 s78, s78, 4096')
a(f'''
s_lshr_b32 s78, s76, 1
s_lshl_b32 s78, s78, 10
s_and_b32 s79, s76, 1
s_lshl3_add_u32 s78, s79, s78
s_add_u32 s78, s78, {KVS}
''')
for p in range(1, 16):
    if p % 4 == 1: a(f's_waitcnt vmcnt({max(0, 15-(p+3))})')
    for e in range(4): a(f'v_add_f32 v{16+e}, v{16+e}, v{16+4*p+e}')
a(f'''
v_cvt_pk_bf16_f32 v16, v16, v17
v_cvt_pk_bf16_f32 v17, v18, v19
buffer_store_dwordx2 v[16:17], v1, {WSR}, s78 offen sc1
s_waitcnt vmcnt(0)
''')
setflag(82)
stamp(5)
a.label('L_GA_wo')
if OPT['oba']:
    wo_part(WA1, OPT['wo2']); stamp(14); ob_rows(); stamp(6); wo_part(max(WA1, OPT['wo2']), 28)
else: wo_part(WA1, 28)
a('s_branch L_G_p3')

a.label('L_GB')
a(f'''
s_mul_i32 s76, s{sGRP}, 112
s_and_b32 s76, s76, 127
s_lshr_b32 s77, s76, 6
s_add_u32 s76, s76, s75
v_add_u32 v14, s76, v3
v_lshrrev_b32 v16, 7, v14
v_xor_b32 v16, s77, v16
v_cmp_eq_u32 vcc, 0, v16
v_and_b32 v17, 127, v14
v_and_b32 v18, 63, v14
v_add_u32 v18, 8192, v18
v_cndmask_b32 v14, v18, v17, vcc
v_xor_b32 v14, v14, v13
v_mov_b32 v17, 4096
v_cndmask_b32 v17, 64, v17, vcc
v_xor_b32 v17, v17, v14
v_add_u32 v{vWR}, v12, v14
v_add_u32 v{vWR+1}, v12, v17
v_add_u32 v{vWR+2}, {STG}, v{vWR}
v_add_u32 v{vWR+3}, {STG}, v{vWR+1}
v_add_u32 v{vWR+4}, {2*STG}, v{vWR}
v_add_u32 v{vWR+5}, {2*STG}, v{vWR+1}
v_lshl_add_u32 v2, v15, 2, v2
v_mul_u32_u24 v14, 56, v2
v_min_u32 v16, 48, v3
s_mul_i32 s76, s{sSG}, 1568
v_add3_u32 v14, v14, v16, s76
s_mov_b32 s76, {hex(f2u(LOG2E))}
s_mov_b32 s77, {hex(f2u(LOG2E))}
''')
vEP, vEN, vKA, vTR, vVO = 112, 128, 144, 48, 160
vMX = 216
vPW, vPR, vVW, vSP, vINF = 200, 204, 214, 230, 15
assert L_PK % 8192 == 0
a(f'''
s_lshl_b32 s78, s{sSG}, 14
s_add_u32 s78, s78, {L_PK}
s_lshl_b32 s79, s{sTH}, 12
v_and_b32 v16, 31, v0
v_bfe_u32 v17, v16, 1, 3
v_xor_b32 v17, v17, v15
v_lshlrev_b32 v17, 3, v17
v_lshl_or_b32 v17, v16, 6, v17
s_add_u32 s80, s78, s79
v_add_u32 v{vPW}, s80, v17
v_xor_b32 v{vPW+1}, 16, v{vPW}
v_xor_b32 v{vPW+2}, 32, v{vPW}
v_xor_b32 v{vPW+3}, 48, v{vPW}
v_lshrrev_b32 v16, 1, v2
v_lshlrev_b32 v16, 3, v16
v_xor_b32 v16, v16, v3
v_lshl_or_b32 v16, v2, 6, v16
s_lshl1_add_u32 s80, s79, s78
s_add_u32 s81, s80, s79
v_add_u32 v{vPR}, s81, v16
v_xor_b32 v{vPR+1}, 32, v{vPR}
v_xor_b32 v{vPR+2}, 4096, v{vPR}
v_xor_b32 v{vPR+3}, 32, v{vPR+2}
s_lshl_b32 s80, s{sWQ}, 12
s_add_u32 s80, s80, {L_VX}
v_add_u32 v{vVW}, s80, v1
s_xor_b32 s80, s{sWQ}, 2
s_lshl_b32 s80, s80, 12
s_add_u32 s80, s80, {L_VX}
v_add_u32 v{vVW+1}, s80, v1
s_lshl_b32 s80, s{sWQ}, 2
s_add_u32 s80, s80, {L_PAIR}
v_mov_b32 v12, s80
v_xor_b32 v13, 8, v12
v_mul_u32_u24 v{vINF}, 255, v15
v_lshlrev_b32 v{vINF}, 23, v{vINF}
s_lshl1_add_u32 s78, s{sHB}, s{sTH}
s_lshl4_add_u32 s78, s78, s{sTB}
s_lshl_b32 s82, s78, 7
s_add_u32 s82, s82, {FKV}
s_lshl_b32 s78, s78, 12
s_add_u32 s78, s78, {PART}
''')
def phi_reads(lg):
    for c in range(2):
        for jj in range(2):
            a(f'ds_read_b64_tr_b16 {vr(vPH+4*c+2*jj,2)}, v14 offset:{L_PHI + (16*c+8*jj)*56}'); lg.add('phi')
def phi_fix(lg):
    lg.wait('phi')
    a(f's_mov_b32 exec_lo, 0\nv_mov_b64 v[{vPH+6}:{vPH+7}], 0\ns_mov_b32 exec_lo, -1')
def pack_proj(j):
    for tt in range(2):
        Y = acc(tt, j); p = vPK + 8 * tt
        for i in range(8): a(f'v_cvt_pk_bf16_f32 v{p+i}, v{Y+2*i}, v{Y+2*i+1}')
        a(f'{MF} {vr(Y,16)}, {vr(vPH,4)}, {vr(p,4)}, 0\ns_nop 0')
        a(f'{MF} {vr(Y,16)}, {vr(vPH+4,4)}, {vr(p+4,4)}, {vr(Y,16)}')
def f_minmax(j):
    g = []
    for tt in range(2):
        Y = acc(tt, j); m = vMX + 4 * tt
        g += [f'v_max3_f32 v{m}, v{Y}, v{Y+1}, v{Y+2}', f'v_min3_f32 v{m+2}, v{Y}, v{Y+1}, v{Y+2}']
        for i in range(3, 15, 2): g += [f'v_max3_f32 v{m}, v{m}, v{Y+i}, v{Y+i+1}', f'v_min3_f32 v{m+2}, v{m+2}, v{Y+i}, v{Y+i+1}']
        g += [f'v_max_f32 v{m}, v{m}, v{Y+15}', f'v_min_f32 v{m+2}, v{m+2}, v{Y+15}']
    m = vMX
    g += f'''s_nop 0
    v_permlane32_swap_b32 v{m}, v{m+4}
    v_permlane32_swap_b32 v{m+2}, v{m+6}
    v_max_f32 v{m}, v{m}, v{m+4}
    v_min_f32 v{m+2}, v{m+2}, v{m+6}
    v_mul_f32 v{m+4}, s76, v{m}
    v_mul_f32 v{m}, s76, v{m}
    v_mul_f32 v{m+6}, s76, v{m+2}
    v_mul_f32 v{m+2}, s76, v{m+2}
    v_permlane32_swap_b32 v{m}, v{m+4}
    v_add_f32 v{m+1}, v{m}, v{vINF}
    v_permlane32_swap_b32 v{m+2}, v{m+6}
    v_add_f32 v{m+5}, v{m+4}, v{vINF}
    v_sub_f32 v{m+3}, v{m+2}, v{vINF}
    v_sub_f32 v{m+7}, v{m+6}, v{vINF}'''.split('\n')
    return g
def f_soft(Y, m, mix=None, keep=None, pre=None, mid=None, first=0):
    for i in range(0, 16, 2):
        sel = 'op_sel:[0,0,1] op_sel_hi:[1,1,1]' if i >= 12 else 'op_sel_hi:[1,1,0]'
        a(f'v_pk_fma_f32 {vr(vEP+i,2)}, {vr(Y+i,2)}, s[76:77], v[{m}:{m+1}] {sel} neg_lo:[0,0,1] neg_hi:[0,0,1]')
        a(f'v_pk_fma_f32 {vr(vEN+i,2)}, {vr(Y+i,2)}, s[76:77], v[{m+2}:{m+3}] {sel} neg_lo:[1,0,0] neg_hi:[1,0,0]')
    if pre: pre()
    assert vEN == vEP + 16
    for i in range(32):
        if mix and i >= first and (i - first) % 3 == 0 and i - first < 24: mix((i - first) // 3)
        a(f'v_exp_f32 v{vEP+i}, v{vEP+i}')
    if keep:
        for i in range(8): a(f'v_cvt_pk_bf16_f32 v{Y+i}, v{vEP+2*i}, v{vEP+2*i+1}')
    if mid: mid()
    a(f'v_pk_add_f32 v[{m}:{m+1}], {vr(vEP,2)}, {vr(vEP+2,2)}\nv_pk_add_f32 v[{m+2}:{m+3}], {vr(vEN,2)}, {vr(vEN+2,2)}')
    for i in range(4, 16, 2): a(f'v_pk_add_f32 v[{m}:{m+1}], v[{m}:{m+1}], {vr(vEP+i,2)}\nv_pk_add_f32 v[{m+2}:{m+3}], v[{m+2}:{m+3}], {vr(vEN+i,2)}')
    a(f'''
    v_add_f32 v{m}, v{m}, v{m+1}
    v_add_f32 v{m+2}, v{m+2}, v{m+3}
    s_nop 1
    v_permlane32_swap_b32 v{m}, v{m+2}
    ''')
    if keep:
        a(f'''
        v_add_f32 v{keep}, v{m}, v{m+2}
        v_add_f32 v{m+2}, v{m}, v{m+2}
        s_nop 1
        v_permlane32_swap_b32 v{keep}, v{m+2}
        v_rcp_f32 v{m+2}, v{m+2}
        s_nop 0
        v_mul_f32 v{m+2}, v{m+2}, v{keep}
        ''')
    else:
        a(f'''
        v_add_f32 v{m}, v{m}, v{m+2}
        v_rcp_f32 v{m}, v{m}
        s_nop 0
        v_mov_b32 v{m+2}, v{m}
        s_nop 1
        v_permlane32_swap_b32 v{m}, v{m+2}
        ''')
        for i in range(0, 16, 2): a(f'v_pk_mul_f32 {vr(vEP+i,2)}, {vr(vEP+i,2)}, v[{m}:{m+1}] op_sel_hi:[1,0]')
    for i in range(0, 16, 2): a(f'v_pk_mul_f32 {vr(vEN+i,2)}, {vr(vEN+i,2)}, v[{m+2}:{m+3}] op_sel_hi:[1,0]')
    if not keep:
        for i in range(8): a(f'v_cvt_pk_bf16_f32 v{Y+i}, v{vEP+2*i}, v{vEP+2*i+1}')
    for i in range(8): a(f'v_cvt_pk_bf16_f32 v{Y+8+i}, v{vEN+2*i}, v{vEN+2*i+1}')
lg, half, tail_rd = gemm('TTN', (1, 0, 2), {}, extra={7: phi_fix}, tail_reads={4: phi_reads})
def vmix(p0, stop=99):
    def f(k):
        half(p0 + (k >> 1), k & 1)
        if k & 1 == 0 and p0 + (k >> 1) + 2 < stop: tail_rd(p0 + (k >> 1) + 2)
    return f
a('s_nop 7')
pack_proj(1)
a('s_nop 0')
g = f_minmax(1)
for l in g[:32]: a(l)
tail_rd(8); tail_rd(9)
for l in g[32:]: a(l)
for tt in range(2):
    K = acc(tt, 1)
    f_soft(K, vMX + 4 * tt, vmix(8 + 4 * tt, 16))
    if tt: tail_rd(16); tail_rd(17)
    for s in range(2):
        for g4 in range(4): a(f'ds_write_b64 v{vPW+g4}, {vr(K+8*s+2*g4,2)} offset:{8192*s+2048*tt}'); lg.add('pk')
stamp(3)
pack_proj(0)
g = f_minmax(0); mx = vmix(16)
for k in range(8):
    mx(k)
    for l in g[:5 if k else 1]: a(l)
    g = g[5 if k else 1:]
for l in g: a(l)
def v_out():
    for tt in range(2):
        V = acc(tt, 2)
        for i in range(8): a(f'v_cvt_pk_bf16_f32 v{V+i}, v{V+2*i}, v{V+2*i+1}')
        a('s_mov_b64 exec, s[100:101]')
        for i in range(0, 8, 2): a(f'v_mov_b64 v[{V+i}:{V+i+1}], v[{vONE}:{vONE+1}]')
        a('s_mov_b64 exec, -1')
        for m in range(2): a(f'ds_write_b128 v{vVW}, {vr(V+4*m,4)} offset:{2048*tt+1024*m}')
    a('ds_write_b32 v12, v12')
f_soft(acc(0, 0), vMX, vmix(20), keep=vSP, mid=v_out)
lg = Ctr('lgkmcnt')
def kv_reads(o, tt):
    for m in range(2):
        for jj in range(2):
            a(f'ds_read_b64_tr_b16 {vr(vTR+16*o+8*tt+4*m+2*jj,2)}, v{vPR+2*o+jj} offset:{2048*tt+1024*m+512*jj}'); lg.add((o, tt, m))
        if o: a(f'ds_read_b128 {vr(vVO+8*tt+4*m,4)}, v{vVW+1} offset:{2048*tt+1024*m}'); lg.add((o, tt, m))
a(f's_mov_b32 s{sSPIN}, 0x400000\nds_read_b32 v2, v13')
kv_reads(0, 0); kv_reads(0, 1)
def pair_wait():
    a(f'''
    L_pair:
    s_waitcnt lgkmcnt(0)
    v_cmp_ne_u32 vcc, 0, v2
    s_cbranch_vccnz L_paird
    ds_read_b32 v2, v13
    s_sub_u32 s{sSPIN}, s{sSPIN}, 1
    s_cbranch_scc0 L_pair
    s_waitcnt lgkmcnt(0)
    L_paird:
    ''')
    lg.q = []
    kv_reads(1, 0); kv_reads(1, 1)
def kvmix(k):
    o, tt, m = k >> 2, (k >> 1) & 1, k & 1
    lg.wait((o, tt, m))
    Vf = (acc(tt, 2) + 4 * m) if o == 0 else (vVO + 8 * tt + 4 * m)
    a(f'{MF} {vr(vKA,16)}, {vr(vTR+16*o+8*tt+4*m,4)}, {vr(Vf,4)}, {vr(vKA,16) if k else 0}')
def kv_store():
    for q in range(4): a(f'buffer_store_dwordx4 {vr(vKA+4*q,4)}, v1, {WSR}, s78 offen offset:{1024*q} sc1')
    stamp(10)
def kvmix2(k):
    kvmix(k)
    if OPT['b8e'] == 2 and k == 7: a('s_barrier')
    if OPT['b8e'] == 3 and k == 3: a('s_barrier')
f_soft(acc(1, 0), vMX + 4, kvmix2, keep=vSP + 1, pre=pair_wait, mid=(lambda: a('s_barrier')) if OPT['b8e'] == 1 else None)
assert OPT['kvst'] and not OPT['oba']
if OPT['kvst'] == 1: kv_store()
stamp(4)
if not OPT['b8e']:
    a('s_barrier')
    if OPT['kvst'] == 2: kv_store()
a('s_barrier')
if OPT['b8e'] and OPT['kvst'] == 2: kv_store()
if OPT['oba']: phq('store')
a('s_waitcnt vmcnt(0)')
setflag(82)
tag_word(2)
stamp(5)
if OPT['gidle']: a('s_branch L_fin')
wo_part(0, OPT['wo2'])
stamp(14)
if not OPT['oba']: ob_rows()
stamp(6)
wo_part(OPT['wo2'], 28)
a.label('L_G_p3')
a(f's_cmp_ge_u32 s{sI}, 28\ns_cbranch_scc1 L_fin')
stamp(12)
a(f'''
s_add_u32 s82, s{sWQ}, 3
s_and_b32 s82, s82, 3
s_lshl_b32 s82, s82, 12
s_add_u32 s82, s82, {L_SY + 3072 + 512}
v_mov_b32 v9, s82
''')
p3_bases(); p3_sync(1)
a(f'''
s_mov_b32 s{sSPIN}, 0x40000
L_ob_try:
s_mov_b64 exec, 0xff
buffer_load_dwordx2 v[14:15], v{vPF}, {WSR}, 0 offen sc1
ds_read_b32 v13, v9
s_waitcnt vmcnt(0) lgkmcnt(0)
v_cmp_ne_u64 vcc, {vr(vTAG,2)}, v[14:15]
v_cmp_ne_u32 s[82:83], 0, v13
s_mov_b64 exec, -1
s_cbranch_vccz L_ob_early
s_cmp_lg_u32 s82, 0
s_cbranch_scc1 L_ob_late
s_sleep {OPT['gsleep']}
s_sub_u32 s{sSPIN}, s{sSPIN}, 1
s_cbranch_scc0 L_ob_try
L_ob_late:
s_barrier
s_barrier
''')
a('s_branch L_p3_wait\nL_ob_early:')
stamp(7)
for h in range(0 if OPT['noload'] else 8): o_loads(h)
stamp(11)
a('s_barrier\ns_barrier\ns_branch L_p3')

a('; WARMEND')
a.label('L_code_end')
a.label('L_fallback')
a(f'''
s_mov_b32 exec_lo, 0
v_mov_b32 v{Q3+6}, 0
s_mov_b32 exec_lo, -1
s_lshl_b32 s76, s{sH}, 18
s_add_u32 s76, s76, {KVF}
s_mov_b32 s77, s76
s_add_u32 s78, s76, {64*4096}
v_mov_b32 v12, 0xff800000
''')
a.label('L_fb1')
a(f'''
buffer_load_dwordx4 {vr(vKV,4)}, v1, {WSR}, s77 offen sc1
buffer_load_dwordx4 {vr(vKV+4,4)}, v1, {WSR}, s77 offen offset:1024 sc1
s_waitcnt vmcnt(0)
{MF} {vr(vS,16)}, {vr(vKV,4)}, {vr(Q3,4)}, 0
{MF} {vr(vS,16)}, {vr(vKV+4,4)}, {vr(Q3+4,4)}, {vr(vS,16)}
s_nop 11
''')
for i in range(0, 16, 2): a(f'v_max3_f32 v12, v12, v{vS+i}, v{vS+i+1}')
a(f'''
s_add_u32 s77, s77, 4096
s_cmp_lt_u32 s77, s78
s_cbranch_scc1 L_fb1
v_mov_b32 v13, v12
s_nop 1
v_permlane32_swap_b32 v12, v13
v_max_f32 v12, v12, v13
''')
for i in range(0, 16, 2): a(f'v_mov_b64 v[{vA+i}:{vA+i+1}], 0')
a.label('L_fb2')
for c in range(4): a(f'buffer_load_dwordx4 {vr(vKV+4*c,4)}, v1, {WSR}, s76 offen offset:{1024*c} sc1')
a(f'''
s_waitcnt vmcnt(0)
{MF} {vr(vS,16)}, {vr(vKV,4)}, {vr(Q3,4)}, 0
{MF} {vr(vS,16)}, {vr(vKV+4,4)}, {vr(Q3+4,4)}, {vr(vS,16)}
s_nop 11
''')
for i in range(16): a(f'v_sub_f32 v{vS+i}, v{vS+i}, v12')
for i in range(16): a(f'v_exp_f32 v{vS+i}, v{vS+i}')
a(f'''
s_nop 1
{SM} {vr(vA,16)}, {vr(vKV+8,4)}, {vr(vS,8)}, v{vIDX}
{SM} {vr(vA,16)}, {vr(vKV+12,4)}, {vr(vS+8,8)}, v{vIDX}
s_add_u32 s76, s76, 4096
s_cmp_lt_u32 s76, s78
s_cbranch_scc1 L_fb2
s_nop 11
''')
rowsum()
a('s_nop 0')
scale_pack()
a('s_branch L_ostore')

if OPT['wtail'] or OPT['wpre']:
    a.lines, cnt = insert_warm_chains(a.lines, OPT['wsp'])
a.lines = [l for l in a.lines if not l.startswith('; WARM')]
if OPT['align']:
    a.lines, nfix = align_runs(a.lines)
bad = check_hazards(a.lines)
for b in bad[:10]: print('HAZARD', b, file=sys.stderr)
import re
for l in a.lines:
    m = re.search(r'lgkmcnt\((\d+)\)', l)
    assert not (m and int(m.group(1)) > 15), l

hdr = open('cdna_kernels/' + NAME + '.s.ref').read().split('; @launch')[0]
out = hdr + '; @launch grid=(256,1,1) block=(512,1,1) lds=163840\n'
out += f'''.amdgcn_target "amdgcn-amd-amdhsa--gfx950"
.text
.globl {NAME}_kernel
.p2align 8
.type {NAME}_kernel,@function
''' + a.text() + f'''.section .rodata,"a"
.p2align 6
.amdhsa_kernel {NAME}_kernel
  .amdhsa_next_free_vgpr 256
  .amdhsa_next_free_sgpr 102
  .amdhsa_accum_offset 256
  .amdhsa_group_segment_fixed_size 0
  .amdhsa_kernarg_size 80
  .amdhsa_user_sgpr_count 2
  .amdhsa_user_sgpr_kernarg_segment_ptr 1
  .amdhsa_system_sgpr_workgroup_id_x 1
.end_amdhsa_kernel
'''
open(sys.argv[1], 'w').write(out)
```

```python
import re

def vr(a, n=1):
    return f'v{a}' if n == 1 else f'v[{a}:{a+n-1}]'
def sr(a, n=1):
    return f's{a}' if n == 1 else f's[{a}:{a+n-1}]'

class Asm:
    def __init__(self):
        self.lines = []
        self.nlab = 0
    def __call__(self, text):
        for l in text.split('\n'):
            l = l.strip()
            if l: self.lines.append(l)
    def label(self, name):
        self.lines.append(name + ':')
    def newlabel(self, base='L'):
        self.nlab += 1
        return f'{base}_{self.nlab}'
    def comment(self, t):
        self.lines.append('; ' + t)
    def text(self):
        out = []
        for l in self.lines:
            if l.endswith(':') or l.startswith('.') : out.append(l)
            else: out.append('    ' + l)
        return '\n'.join(out) + '\n'

REG = re.compile(r'\b([vsa])(?:(\d+)|\[(\d+):(\d+)\])')
def regs_of(op):
    out = set()
    for m in REG.finditer(op):
        k = m.group(1)
        if m.group(2) is not None: out.add((k, int(m.group(2))))
        else:
            for i in range(int(m.group(3)), int(m.group(4)) + 1): out.add((k, i))
    if re.search(r'\bvcc\b', op): out.add(('s', 'vcc'))
    if re.search(r'\bexec\b', op): out.add(('s', 'exec'))
    if re.search(r'\bm0\b', op): out.add(('s', 'm0'))
    return out

TRANS = ('v_exp_', 'v_log_', 'v_rcp_', 'v_rsq_', 'v_sqrt_', 'v_sin_', 'v_cos_')
def parse(line):
    line = line.split(';')[0].strip()
    if not line or line.endswith(':') or line.startswith('.'): return None
    sp = line.split(None, 1)
    mn = sp[0]; rest = sp[1] if len(sp) > 1 else ''
    ops = [o.strip() for o in re.split(r',(?![^\[]*\])', rest)] if rest else []
    d = dict(mn=mn, line=line, w=set(), r=set(), kind='other', srcc=set(), ab=set(), states=1)
    if mn == 's_nop': d['states'] = int(rest) + 1
    if mn.startswith('v_mfma') or mn.startswith('v_smfmac'):
        d['kind'] = 'mfma'
        d['w'] = regs_of(ops[0]); d['ab'] = regs_of(ops[1]) | regs_of(ops[2])
        if mn.startswith('v_smfmac'):
            d['srcc'] = regs_of(ops[0]); d['ab'] |= regs_of(ops[3])
        else: d['srcc'] = regs_of(ops[3])
        d['r'] = d['ab'] | d['srcc']
        d['passes'] = 8 if '32x32' in mn else 4
    elif mn.startswith('v_'):
        d['kind'] = 'valu'
        if mn.startswith('v_cmp'):
            d['w'] = regs_of(ops[0]); d['r'] = set().union(*[regs_of(o) for o in ops[1:]])
            if mn.startswith('v_cmpx'): d['w'].add(('s', 'exec'))
        elif mn.startswith('v_permlane') :
            d['w'] = regs_of(ops[0]) | regs_of(ops[1]); d['r'] = set(d['w']); d['perm'] = True
        else:
            d['w'] = regs_of(ops[0]); d['r'] = set().union(*[regs_of(o) for o in ops[1:]]) if len(ops) > 1 else set()
            if mn.startswith('v_fmac') or mn.startswith('v_pk_fmac'): d['r'] |= d['w']
            if '_co_' in mn: d['w'] |= regs_of(ops[1])
        d['trans'] = mn.startswith(TRANS)
        d['rdlane'] = mn.startswith('v_readlane') or mn.startswith('v_readfirstlane')
        d['dpp'] = 'quad_perm' in line or 'row_' in line
    elif mn.startswith('buffer_') or mn.startswith('global_'):
        d['kind'] = 'vmem'
        allr = set().union(*[regs_of(o) for o in ops])
        isload = '_load_' in mn and not re.search(r'\blds\b', line)
        if isload:
            d['w'] = regs_of(ops[0]); d['r'] = set().union(*[regs_of(o) for o in ops[1:]])
        else: d['r'] = allr
        if re.search(r'\blds\b', line): d['r'].add(('s', 'm0')); d['ldsdma'] = True
        if ('store_dwordx4' in mn or 'store_dwordx3' in mn):
            d['widestore'] = regs_of(ops[0] if mn.startswith('buffer_') else ops[1])
    elif mn.startswith('ds_'):
        d['kind'] = 'ds'
        if mn.startswith('ds_read') or '_rtn' in mn or 'permute' in mn or 'swizzle' in mn:
            d['w'] = regs_of(ops[0]); d['r'] = set().union(*[regs_of(o) for o in ops[1:]])
        else: d['r'] = set().union(*[regs_of(o) for o in ops])
    elif mn.startswith('s_'):
        d['kind'] = 'salu'
        if ops and not mn.startswith(('s_cmp', 's_cbranch', 's_branch', 's_waitcnt', 's_nop', 's_barrier', 's_sleep', 's_setprio', 's_bitcmp', 's_endpgm')):
            d['w'] = regs_of(ops[0]); d['r'] = set().union(*[regs_of(o) for o in ops[1:]]) if len(ops) > 1 else set()
            if 'saveexec' in mn: d['w'].add(('s', 'exec'))
        else:
            d['r'] = set().union(*[regs_of(o) for o in ops]) if ops else set()
    return d

def need_states(p, c):
    n = 0
    isv = lambda s: {x for x in s if x[0] in 'va'}
    iss = lambda s: {x for x in s if x[0] == 's'}
    if p['kind'] == 'valu':
        wv = isv(p['w']); ws = iss(p['w'])
        if c['kind'] == 'mfma':
            if wv & c['r']: n = max(n, 2)
            if ('s', 'exec') in ws: n = max(n, 4)
        if c['kind'] == 'valu':
            if c.get('perm') and wv & c['r']: n = max(n, 2)
            if c.get('dpp') and wv & c['r']: n = max(n, 2)
            if c.get('rdlane') and wv & c['r']: n = max(n, 1)
            if p.get('trans') and not c.get('trans') and wv & c['r']: n = max(n, 1)
            if ws & c['r']: n = max(n, 2)
        if c['kind'] == 'vmem' and ws & c['r']: n = max(n, 5)
        if c['kind'] == 'salu' and ws & c['r']: n = max(n, 1)
    if p['kind'] == 'mfma':
        ps = p['passes']
        big = {4: 8, 8: 12}[ps]; ov = {4: 6, 8: 10}[ps]; war = {4: 3, 8: 7}[ps]
        if c['kind'] == 'mfma':
            if p['w'] & c['ab']: n = max(n, big)
            if p['w'] & c['srcc']:
                if not (p['w'] == c['srcc'] and ps == c['passes']): n = max(n, ov)
            elif p['w'] & c['w'] and not (p['w'] == c['w'] and ps == c['passes']): n = max(n, ov)
        elif c['kind'] in ('valu', 'vmem', 'ds'):
            if p['w'] & (c['r'] | c['w']): n = max(n, big)
            if c['kind'] == 'valu' and p['srcc'] & c['w']: n = max(n, war)
    if p['kind'] == 'vmem' and p.get('widestore'):
        if p['widestore'] & c['w']: n = max(n, 2 if c['kind'] == 'valu' else 1)
    if p['kind'] == 'salu' and ('s', 'm0') in p['w'] and c.get('ldsdma'): n = max(n, 1)
    return n

def check_hazards(lines):
    ins = []; labels = {}
    for l in lines:
        ls = l.split(';')[0].strip()
        if ls.endswith(':'): labels[ls[:-1]] = len(ins); continue
        d = parse(l)
        if d: ins.append(d)
    bad = []
    for i, p in enumerate(ins):
        if p['kind'] not in ('valu', 'mfma', 'vmem', 'salu'): continue
        maxd = 12 if p['kind'] == 'mfma' else 5
        stack = [(i, 0)]; seen = set()
        while stack:
            j, dist = stack.pop()
            cur = ins[j]
            nxt = []
            if cur['mn'] == 's_endpgm': continue
            if cur['mn'] == 's_branch' or (cur['mn'].startswith('s_cbranch') and ' L_w' not in cur['line']):
                t = cur['line'].split()[-1]
                if t in labels: nxt.append(labels[t])
            if cur['mn'] != 's_branch': nxt.append(j + 1)
            for k in nxt:
                if k >= len(ins) or (k, dist) in seen: continue
                seen.add((k, dist))
                c = ins[k]
                n = need_states(p, c)
                if n > dist: bad.append((p['line'], c['line'], n, dist))
                nd = dist + c['states']
                if nd < maxd: stack.append((k, nd))
    return bad

import subprocess, tempfile, os
def inst_sizes(lines):
    txt = '.amdgcn_target "amdgcn-amd-amdhsa--gfx950"\n.text\n' + '\n'.join(lines) + '\n'
    d = tempfile.mkdtemp()
    open(d + '/a.s', 'w').write(txt)
    r = subprocess.run(['clang', '-x', 'assembler', '-target', 'amdgcn-amd-amdhsa', '-mcpu=gfx950', '-c', d + '/a.s', '-o', d + '/a.o'], capture_output=True, text=True)
    assert r.returncode == 0, r.stderr[:3000]
    out = subprocess.run(['llvm-objdump', '-d', '--mcpu=gfx950', d + '/a.o'], capture_output=True, text=True).stdout
    sz = []
    for l in out.split('\n'):
        m = re.search(r'//\s*[0-9A-F]+:((?:\s+[0-9A-F]{8})+)', l)
        if m: sz.append(4 * len(m.group(1).split()))
    res = []; k = 0
    for l in lines:
        if parse(l): res.append(sz[k]); k += 1
        else: res.append(None)
    assert k == len(sz), (k, len(sz))
    return res

PROMOTE = ('v_exp_f32', 'v_rcp_f32', 'v_add_f32', 'v_mul_f32', 'v_max_f32', 'v_min_f32', 'v_mov_b32', 'v_sub_f32', 'v_add_u32', 'v_xor_b32', 'v_and_b32', 'v_lshlrev_b32', 'v_lshrrev_b32', 'v_mov_b64')
def align_runs(lines, minrun=5):
    sz = inst_sizes(lines)
    out = []; osz = []; off = 0; i = 0; n = len(lines); nfix = 0
    lastrun = 0
    while i < n:
        if sz[i] == 8 and (not osz or osz[-1] != 8):
            j = i; cnt = 0
            while j < n and sz[j] in (8, None):
                cnt += sz[j] == 8; j += 1
            if cnt >= minrun:
                if off % 8 == 4:
                    k = len(out) - 1; done = False
                    while k >= lastrun and len(out) - k <= 6:
                        mn = out[k].split()[0]
                        if osz[k] == 4 and mn in PROMOTE:
                            out[k] = out[k].replace(mn, mn + '_e64', 1); osz[k] = 8; done = True; break
                        k -= 1
                    if not done: out.append('s_nop 0'); osz.append(4)
                    off += 4; nfix += 1
                while i < j:
                    out.append(lines[i]); osz.append(sz[i]); off += sz[i] or 0; i += 1
                lastrun = len(out)
                continue
        out.append(lines[i]); osz.append(sz[i]); off += sz[i] or 0; i += 1
    return out, nfix

def insert_warm_chains(lines, spacing):
    probe = [l for l in lines]
    names = sorted({l.split()[2] for l in lines if l.startswith('; WARM ')})
    extra = [f'L_w{n}_q{k}:' for n in names for k in range(4)]
    sz = inst_sizes(probe + extra)[:len(lines)]
    out = []; cur = None; since = 0; cnt = {n: 0 for n in names}; pos = {n: [] for n in names}
    def pad():
        k = cnt[cur]; cnt[cur] += 1
        pos[cur].append(len(out))
        out.append(f'L_w{cur}{k}:'); out.append(f's_cbranch_execz L_w{cur}{k+1}')
    for i, l in enumerate(lines):
        if l.startswith('; WARM '): cur = l.split()[2]; since = spacing; continue
        if l.startswith('; WARMEND'): cur = None; continue
        if cur and sz[i]:
            prev = out[-1].split()[0] if out else ''
            cheap = prev.startswith(('v_mfma', 'v_smfmac', 's_branch', 's_endpgm', 's_barrier'))
            nxt = l.split()[0]
            if cur == 'att': want = prev.startswith('v_mfma') and nxt.startswith('v_exp') and since >= spacing * 3 // 4
            else: want = since >= spacing or (cheap and since >= spacing * 5 // 8)
            if want:
                pad(); since = 4
            since += sz[i]
        out.append(l)
    for n in names:
        last = pos[n][-1] + 1
        out[last] = f's_cbranch_execz L_wret_{n}'
        for k in range(4):
            i0 = k * len(pos[n]) // 4
            p = pos[n][i0]
            out[p] = f'L_w{n}_q{k}:\n' + out[p]
            if k: out[pos[n][i0 - 1] + 1] = f's_cbranch_execz L_wret_{n}'
    res = []
    for l in out: res += l.split('\n')
    return res, cnt
```

```python
import sys, math, struct, re
from asmlib import *

NAME = 'concat_heads__softmax_full_mha__linear_kernel_hedgehog__prompt'
OPT = dict(jit=0, qsc=1, split=0, rep4=1, ksleep=8, fl64=0, smem=0, ssleep=2, go=45, gopos=1, woA=16, rpace=0, watt=0, ps1=1, narrow=1, fdw=2, lay=3, tfill=3, tper=4, tk0=2, bmode=0, pace3=8, p0=3, pre=0, b8e=0, zpad=0, ldg=4, wrg=1, nokv=0, last=3, oba=0, ipad=0, woe=0, pace0=3, tid=0, bias=96, ldprio=0, rtry=0, wgf=0, pp=0, pp1=0, rmap=0, eflag=3, opf=0, gdelay=1, mode=0, wsp=128, wtail=0, wpre=0, cap=8, p3prio=2, badtag=0, ack=0, wo1=7, wo2=18, kvst=2, done=4, tlb=0, bafter=2, x1early=0, outco=1, dyn=0, kvfirst=0, mprio=1, nowo=0, noload=0, gprio=0, tprio=0, align=1, r2=1, b9=5, qrot=3, pwlo=0, pwhi=256, rtab=0x26045230, warm=4, womall=13, p1only=0, nomfma=0, nolds=0, stamp=0, probe=-1, probeT=1, force_fb=0, rot=1, look0=10, look=10, nb=5, gidle=0, outsc=1, gsleep=4, psleep=1, prio=1, pace=1, nfill=4)
for a in sys.argv[2:]:
    k, v = a.split('='); assert k in OPT, k; OPT[k] = int(v, 0)

MF = 'v_mfma_f32_32x32x16_bf16'
SM = 'v_smfmac_f32_32x32x32_bf16'
def f2u(x): return struct.unpack('<I', struct.pack('<f', x))[0]
LOG2E = math.log2(math.e)
QSCALE = f2u(28 ** -0.5 * LOG2E)
BIAS = float(OPT['bias'])

FA, FKS, FOB, FKV, FOA = 0x0, 0x50000, 0x10000, 0x20000, 0x30000
EPOCH = 0x80000
KVS = 0x90000
STAMP = 0xA0000
QF, KVF, OF, PART, PHQ = 0x100000, 0x400000, 0x800000, 0xC00000, 0x1000000
WS_SIZE = 0x1400000
STG = 53248
L_RING = 4096
def stg_slot(s): return s % 3
L_PHI, L_PK, L_VX = 0, 73728, L_RING + 2 * STG + 16384
L_WOB, L_WOA, L_RED = 0, 57344, 114688
L_QX, L_PAIR = 57344, 65536
L_GX, L_TX, L_SY = L_RED, L_RED + 16384, L_RED + 32768

SX, SW, SWS, SDBG, SOUT, SWOA, SWOB, SPHI = 24, 28, 32, 36, 40, 44, 48, 52
sW, sWQ, sXC, sI, sROLE, sTB, sGRP, sH, sQB, sU, sTB64 = range(56, 67)
sT = 67
sPO, sPL = 84, 85
sSPIN = 90
sTAG = 92
vTAG = 248
vTW = 253
WSR = f's[{SWS}:{SWS+3}]'

a = Asm()
class Ctr:
    def __init__(self, name): self.name = name; self.q = []
    def add(self, tag, n=1): self.q += [tag] * n
    def need(self, *tags):
        idx = max([i for i, t in enumerate(self.q) if t in tags], default=-1)
        if idx < 0: return None
        n = len(self.q) - 1 - idx
        self.q = self.q[idx+1:]
        return n
    def wait(self, *tags):
        n = self.need(*tags)
        if n is not None: a(f's_waitcnt {self.name}({n})')
def srd(base, lo, size):
    a(f's_mov_b32 s{base}, s{lo}\ns_mov_b32 s{base+1}, s{lo+1}\ns_mov_b32 s{base+2}, {size}\ns_mov_b32 s{base+3}, 0x20000')
import random
_jr = random.Random(OPT['jit'])
def stamp(idx):
    if OPT['jit'] and _jr.random() < 0.6:
        L = a.newlabel('L_jit')
        a(f's_cselect_b32 s89, 1, 0\ns_lshl3_add_u32 s88, s2, s{sW}\ns_mul_i32 s88, s88, {_jr.randrange(1 << 20) | 1}\ns_bitcmp1_b32 s88, {_jr.randrange(6, 12)}\ns_cbranch_scc1 {L}\ns_sleep {_jr.choice((5, 20, 60, 120))}\n{L}:\ns_cmp_eq_u32 s89, 1')
    if not OPT['stamp']: return
    a(f's_memrealtime s[88:89]\ns_waitcnt lgkmcnt(0)\nv_writelane_b32 v254, s88, {idx}')
def st5(idx):
    if OPT['stamp'] == 5: a(f's_memrealtime s[{4+2*idx}:{5+2*idx}]')
def poll(voff, mask, vtmp, sleep=1):
    L = a.newlabel('L_poll'); D = a.newlabel('L_polld')
    a(f's_mov_b64 exec, {mask}\ns_mov_b32 s{sSPIN}, 0x40000')
    a.label(L)
    a(f'buffer_load_dwordx2 {vr(vtmp,2)}, v{voff}, {WSR}, 0 offen sc1\ns_waitcnt vmcnt(0)')
    a(f'v_cmp_ne_u64 vcc, {vr(vTAG,2)}, {vr(vtmp,2)}\ns_cbranch_vccz {D}')
    if OPT['narrow']: a('s_mov_b64 exec, vcc')
    if sleep: a(f's_sleep {sleep}')
    a(f's_sub_u32 s{sSPIN}, s{sSPIN}, 1\ns_cbranch_scc0 {L}')
    a.label(D)
    a('s_mov_b64 exec, -1')
def ppoll(voff, mask, regs, gap):
    L = a.newlabel('L_pp'); D = a.newlabel('L_ppd')
    ld = lambda r: a(f'buffer_load_dwordx2 {vr(r,2)}, v{voff}, {WSR}, 0 offen sc1')
    a(f's_mov_b64 exec, {mask}\ns_mov_b32 s{sSPIN}, 0x40000')
    for r in regs[:-1]: ld(r); a(f's_sleep {gap}')
    a.label(L)
    for i, r in enumerate(regs):
        ld(regs[i-1])
        a(f's_waitcnt vmcnt({len(regs)-1})\nv_cmp_ne_u64 vcc, {vr(vTAG,2)}, {vr(r,2)}\ns_cbranch_vccz {D}\ns_sleep {gap}')
    a(f's_sub_u32 s{sSPIN}, s{sSPIN}, 1\ns_cbranch_scc0 {L}')
    a.label(D)
    a('s_mov_b64 exec, -1')
def spoll(soff, n):
    a(f'v_readfirstlane_b32 s{sTAG}, v{vTAG}\nv_readfirstlane_b32 s{sTAG+1}, v{vTAG+1}\ns_add_u32 s20, s22, s{soff}\ns_addc_u32 s21, s23, 0')
    for g in range(0, n, 8):
        L = a.newlabel('L_sp'); D = a.newlabel('L_spd')
        a(f's_mov_b32 s{sSPIN}, 0x40000\n{L}:')
        for i in range(8): a(f's_load_dwordx2 s[{4+2*i}:{5+2*i}], s[20:21], {128*(g+i)} glc')
        a('s_waitcnt lgkmcnt(0)')
        for i in range(8):
            a(f's_xor_b64 s[{4+2*i}:{5+2*i}], s[{4+2*i}:{5+2*i}], s[{sTAG}:{sTAG+1}]')
            if i: a(f's_or_b64 s[4:5], s[4:5], s[{4+2*i}:{5+2*i}]')
        a(f's_cbranch_scc0 {D}\ns_sleep {OPT["ssleep"]}\ns_sub_u32 s{sSPIN}, s{sSPIN}, 1\ns_cbranch_scc0 {L}\n{D}:')
def setflag(soff, mask=0xff):
    if OPT['fl64']: mask &= 15
    a(f's_mov_b64 exec, {mask}\nbuffer_store_dwordx4 {vr(vTAG,4)}, v1, {WSR}, s{soff} offen sc1\ns_mov_b64 exec, -1')
def tag_load():
    return f'buffer_load_dwordx4 {vr(vTAG,4)}, off, s[{SDBG}:{SDBG+3}], 0 sc1'
def tag_word(t):
    a(f'''
    v_and_b32 v{t}, 3, v0
    v_lshlrev_b32 v{t}, 4, v{t}
    v_lshrrev_b64 v[{t}:{t+1}], v{t}, {vr(vTAG,2)}
    v_lshlrev_b32 v{vTW}, 16, v{t}
    s_mov_b32 s86, 0x07060302
    s_mov_b32 s87, 0x07060100
    ''')
def tag_pack(p):
    a(f'''
    v_permlane32_swap_b32 v{p+6}, v{p+7}
    v_perm_b32 v{p+7}, v{vTW}, v{p+3}, s86
    v_perm_b32 v{p+3}, v{vTW}, v{p+3}, s87
    ''')
def warm(name):
    a('s_mov_b64 exec, 0')
    for k in range(1, 4): a(f's_cmp_eq_u32 s{sWQ}, {k}\ns_cbranch_scc1 L_w{name}_q{k}')
    a(f's_branch L_w{name}_q0\nL_wret_{name}:\ns_mov_b64 exec, -1')
def wo_touch(t):
    a(f'''
    s_lshl2_add_u32 s98, s2, s{sWQ}
    s_mulk_i32 s98, {4*128}
    v_lshlrev_b32 v{t}, 7, v0
    s_mov_b64 exec, 15
    buffer_load_dword v255, v{t}, s[{SWOA}:{SWOA+3}], s98 offen
    buffer_load_dword v255, v{t}, s[{SWOB}:{SWOB+3}], s98 offen
    {f'buffer_load_dword v255, v{t}, {WSR}, s98 offen' if OPT['warm'] & 4 else ''}
    s_mov_b64 exec, -1
    ''')
def job_ids():
    a(f'''
    s_mul_i32 s{sT}, s{sI}, 37
    s_lshr_b32 s{sT}, s{sT}, 8
    s_mul_i32 s{sT+1}, s{sT}, 7
    s_sub_u32 s{sU}, s{sI}, s{sT+1}
    s_lshl_b32 s{sTB64}, s{sXC}, 2
    s_add_u32 s{sTB64}, s{sTB64}, s{sT}
    ''')

a.label(NAME + '_kernel')
if OPT['stamp']: a('s_memrealtime s[86:87]')
a(f'''
s_cmp_ge_u32 s2, 256
s_cbranch_scc1 L_end
s_load_dwordx16 s[4:19], s[0:1], 0
s_load_dwordx4 s[20:23], s[0:1], 64
v_readfirstlane_b32 s{sW}, v0
v_and_b32 v0, 63, v0
s_lshr_b32 s{sW}, s{sW}, 6
s_cmp_lt_u32 s{sW}, 4
''')
def ipad():
    a('s_mov_b64 exec, 0\ns_bitcmp0_b32 s2, 3\ns_cbranch_scc1 L_ipA')
    for r in 'BA':
        if r == 'A': a.label('L_ipA')
        for k in range(1, 4): a(f's_cmp_eq_u32 s{sW}, {k}\ns_cbranch_scc1 L_wip{r}{k}')
        a(f's_branch L_wip{r}0')
if OPT['ipad'] == 2:
    a('s_cbranch_scc0 L_T'); ipad(); a.label('L_T')
else: a('s_cbranch_scc1 L_G')
a(f'''
{('s_bitcmp0_b32 s2, 3', 's_bitcmp1_b32 s2, 7', 's_bitcmp0_b32 s2, 7')[OPT['rmap']]}
{'s_cbranch_scc0 L_ldB' if OPT['lay'] & 1 else 's_cbranch_scc1 L_ldA'}
''')
def ids():
    a(f'''
    s_and_b32 s{sXC}, s2, 7
    s_lshr_b32 s{sI}, s2, 3
    ''')
    if OPT['rmap'] == 0: a(f's_and_b32 s{sROLE}, s{sI}, 1\ns_lshr_b32 s{sQB}, s{sI}, 1')
    else:
        if OPT['rmap'] == 1: a(f's_xor_b32 s{sI}, s{sI}, 16')
        a(f's_lshr_b32 s{sROLE}, s{sI}, 4\ns_and_b32 s{sQB}, s{sI}, 15')
    a(f'''
    s_lshr_b32 s{sT}, s{sXC}, 1
    s_and_b32 s{sTB}, s{sQB}, 3
    s_lshl2_add_u32 s{sTB}, s{sT}, s{sTB}
    s_and_b32 s{sT}, s{sXC}, 1
    s_lshr_b32 s{sGRP}, s{sQB}, 2
    s_lshl2_add_u32 s{sGRP}, s{sT}, s{sGRP}
    s_and_b32 s{sWQ}, s{sW}, 3
    v_lshlrev_b32 v1, 4, v0
    ''')
    if OPT['stamp']: a('v_mov_b32 v254, 0')

vX0, vW0, vH0 = 112, 113, 114
vXg, vWg, vHg = 116, 120, 128
sXo, sWo, sCX, sCW, sOOB, sW5, sRS = 70, 71, 72, 73, 74, 75, 91
sMX, sMW, sMH = 76, 80, 94
def ld_pre():
    ids()
    a(f'''
    v_lshrrev_b32 v16, 3, v0
    v_and_b32 v17, 7, v0
    v_lshrrev_b32 v18, 4, v0
    v_xor_b32 v13, v17, v18
    v_mul_u32_u24 v14, 896, v16
    v_lshl_add_u32 v{vX0}, v13, 4, v14
    s_lshl2_add_u32 s{sXo}, s{sTB}, s{sWQ}
    s_mul_i32 s{sXo}, s{sXo}, 28672
    s_mov_b32 s{SX+2}, 1835008
    s_mov_b32 s{SX+3}, 0x20000
    s_mov_b32 s{SW+2}, 1204224
    s_mov_b32 s{SW+3}, 0x20000
    ''')
    a(f's_lshl_b32 s{sRS}, s{sXC}, 2\ns_lshr_b32 s{sT}, {hex(OPT["rtab"] if OPT["rot"] else 0)}, s{sRS}\ns_and_b32 s{sRS}, s{sT}, 15\ns_lshl_b32 s{sT}, s{sRS}, 7\ns_add_u32 s{sXo}, s{sXo}, s{sT}')
    a(f"s_and_b32 s{sCX}, s{sGRP}, {3 if OPT['qrot'] & 1 else 0}")
def ld_pre2():
    a(f'''
    s_mul_i32 s{sWo}, s{sRS}, {64*2688}
    s_and_b32 s{sCW}, s{sTB}, {3 if OPT['qrot'] & 2 else 0}
    v_and_b32 v18, 1, v18
    v_lshlrev_b32 v13, 2, v18
    v_xor_b32 v13, v17, v13
    s_lshl_b32 s{sT}, s{sWQ}, 4
    v_add_u32 v14, s{sT}, v16
    v_mul_u32_u24 v14, 2688, v14
    v_lshl_add_u32 v{vW0}, v13, 4, v14
    ''')
def x_group(g):
    a(f'''
    s_add_u32 s{sT}, s{sCX}, {g}
    s_and_b32 s{sT}, s{sT}, 3
    s_lshl2_add_u32 s{sMX+g}, s{sWQ}, s{sT}
    s_lshl_b32 s{sMX+g}, s{sMX+g}, 10
    s_mul_i32 s{sT+1}, s{sT}, 7168
    s_and_b32 s{sT}, s{sT}, 1
    s_lshl_b32 s{sT}, s{sT}, 6
    v_xor_b32 v{vXg+g}, s{sT}, v{vX0}
    v_add_u32 v{vXg+g}, s{sT+1}, v{vXg+g}
    ''')
def ld_head(role):
    if OPT['p0'] >> role & 1: a('s_setprio 1')
    if OPT['ldprio'] & (1 << role): a('s_setprio 1')
    ld_pre()
    x_group(0)
    if OPT['pre']: ld_pre2(); w_setup(role)
    for g in range(OPT['pre']):
        if g: x_group(g)
        if g < 4 - role: w_group(role, g)
    a(f'''
    s_waitcnt lgkmcnt(0)
    s_mov_b64 s[{SX}:{SX+1}], s[{4+6*role}:{5+6*role}]
    s_mov_b64 s[{SW}:{SW+1}], s[{6+6*role}:{7+6*role}]
    ''')
    if OPT['stamp']: a('v_writelane_b32 v254, s86, 0')
    stamp(11)
def w_setup(role):
    if role == 0:
        a(f'''
        s_mul_i32 s{sT+1}, s{sGRP}, 336
        s_and_b32 s{sT+2}, s{sT+1}, 127
        s_sub_u32 s{sT+1}, s{sT+1}, s{sT+2}
        s_add_u32 s{sWo}, s{sWo}, s{sT+1}
        s_cmp_gt_u32 s{sT+2}, 48
        s_cselect_b32 s{sOOB}, 4, 3
        ''')
    else:
        a(f'''
        s_mul_i32 s{sT+1}, s{sGRP}, 112
        s_and_b32 s{sT+2}, s{sT+1}, 127
        s_sub_u32 s{sT+1}, s{sT+1}, s{sT+2}
        s_add_u32 s{sWo}, s{sWo}, s{sT+1}
        s_cmp_gt_u32 s{sT+2}, 16
        s_cselect_b32 s{sOOB}, 0, 0x40000000
        s_and_b32 s{sT+2}, s{sT+2}, 64
        s_lshl_b32 s{sT+1}, s{sT+2}, 1
        v_add_u32 v{vW0}, s{sT+1}, v{vW0}
        s_sub_u32 s{sT+2}, 128, s{sT+2}
        s_add_u32 s{sT+2}, s{sT+2}, s{sOOB}
        v_lshrrev_b32 v13, 2, v13
        v_lshl_add_u32 v13, v13, 5, v16
        s_lshl_b32 s{sT}, s{sWQ}, 3
        v_add_u32 v13, s{sT}, v13
        v_mul_u32_u24 v13, 2688, v13
        v_and_b32 v14, 3, v0
        v_lshl_add_u32 v13, v14, 4, v13
        v_add_u32 v{vH0}, s{sT+2}, v13
        s_cmp_eq_u32 s{sCW}, 3
        s_cselect_b32 s{sCW}, 0, s{sCW}
        ''')
def w_group(role, g):
    if role == 0:
        a(f'''
        s_add_u32 s{sT}, s{sCW}, {g}
        s_and_b32 s{sT}, s{sT}, 3
        s_lshl2_add_u32 s{sMW+g}, s{sT}, s{sWQ}
        s_lshl_b32 s{sMW+g}, s{sMW+g}, 11
        s_cmp_eq_u32 s{sT}, s{sOOB}
        s_cselect_b32 s{sT}, 0x800000, s{sT}
        s_lshl_b32 s{sT}, s{sT}, 7
        v_add_u32 v{vWg+2*g}, s{sT}, v{vW0}
        v_add_u32 v{vWg+2*g+1}, 20480, v{vWg+2*g}
        ''')
    else:
        a(f'''
        s_add_u32 s{sT}, s{sCW}, {g}
        s_sub_u32 s{sT+1}, s{sT}, 3
        s_min_u32 s{sT}, s{sT}, s{sT+1}
        s_mul_i32 s{sT+1}, s{sT}, 12288
        s_lshl_b32 s{sT+2}, s{sWQ}, 10
        s_lshl1_add_u32 s{sMW+g}, s{sT+2}, s{sT+1}
        s_add_u32 s{sMH+g}, s{sT+2}, s{sT+1}
        s_mulk_i32 s{sT}, 896
        v_add_u32 v{vWg+2*g}, s{sT}, v{vW0}
        v_add_u32 v{vWg+2*g+1}, 20480, v{vWg+2*g}
        v_add_u32 v{vHg+g}, s{sT}, v{vH0}
        ''')
def p1_list(role):
    ops = []
    for g in range(4):
        ops.append(('x', g))
        if role == 0 or g < 3: ops += [('w', g, 0), ('w', g, 1)]
        if role == 1 and g < 3: ops.append(('h', g))
    return ops
def p1_op(role, s, op, resume=False, old=False):
    b = L_RING + stg_slot(s) * STG
    g = op[1]
    sw = sW5 if old else sWo
    if op[0] == 'x':
        if s == 0 and OPT['ipad']: a(f'L_wip{"AB"[role]}{g}:\ns_cbranch_execz L_wipr')
        if s == 0 and g > 0 and g >= OPT['pre']: x_group(g)
        a(f's_add_u32 m0, s{sMX+g}, {b}\ns_nop 0\nbuffer_load_dwordx4 v{vXg+g}, s[{SX}:{SX+3}], s{sXo} offen lds')
    elif op[0] == 'w':
        if op[2] == 0:
            if s == 0 and g == 0 and not OPT['pre']: ld_pre2(); w_setup(role)
            if s == 0 and g >= OPT['pre']: w_group(role, g)
        if op[2] == 0 or resume: a(f's_add_u32 m0, s{sMW+g}, {b + 16384}\ns_nop 0')
        a(f'buffer_load_dwordx4 v{vWg+2*g+op[2]}, s[{SW}:{SW+3}], s{sw} offen offset:{1024*op[2]} lds')
    else:
        a(f's_add_u32 m0, s{sMH+g}, {b + 16384 + 8192}\ns_nop 0\nbuffer_load_dwordx4 v{vHg+g}, s[{SW}:{SW+3}], s{sw} offen lds')
def p1_segments(role):
    seg = [[(s, op) for op in p1_list(role)] for s in range(5)]
    X = lambda s: [(s, ('x', g)) for g in range(4)]
    W = lambda s, g: [(s, ('w', g, 0)), (s, ('w', g, 1))] + ([(s, ('h', g))] if role else [])
    if role == 0:
        seg += [X(5) + W(5,0) + W(5,1) + W(5,2), X(6) + W(6,0) + W(6,1), W(6,2), W(6,3) + W(5,3)]
    else:
        seg += [X(5) + W(5,1), X(6) + W(6,1), W(6,0) + W(5,0), W(5,2) + W(6,2)]
    return seg
def p1_adv():
    a(f's_add_u32 s{sRS}, s{sRS}, 1\ns_cmp_eq_u32 s{sRS}, 7\ns_cselect_b32 s{sT}, -6, 1\ns_mul_i32 s{sT+1}, s{sT}, {64*2688}\ns_lshl_b32 s{sT}, s{sT}, 7')
    a(f's_add_u32 s{sWo}, s{sWo}, s{sT+1}\ns_add_u32 s{sXo}, s{sXo}, s{sT}')

NB = OPT['nb']; NS = 8 - NB
vO, vQ, vKV, vS = 16, 80, 112, 112 + 16 * NB
vIDX, vFL = 2, 3
vPA, vPX, vPO, vPF = 240, 244, 246, 247
vOF, vAC, vWF = 112, 176, 208
def p3_setup(br, img, exch):
    a(f'''
    s_and_b32 s94, s{sWQ}, 1
    s_lshr_b32 s95, s{sWQ}, 1
    v_bfe_u32 v12, v0, 2, 2
    v_and_b32 v13, 3, v0
    v_lshlrev_b32 v13, 3, v13
    v_bfe_u32 v14, v0, 4, 1
    v_lshl_or_b32 v13, v14, 5, v13
    s_mul_i32 s96, s95, {224*128}
    s_add_u32 s96, s96, {img}
    v_add_u32 v13, s96, v13
    v_lshrrev_b32 v14, 5, v0
    v_lshl_add_u32 v16, v14, 2, v12
    v_lshrrev_b32 v17, 1, v12
    v_xor_b32 v17, s95, v17
    v_lshl_add_u32 v17, v17, 6, v13
    v_lshl_add_u32 v{vPA}, v16, 7, v17
    v_xor_b32 v{vPA+1}, 64, v{vPA}
    v_mov_b32 v18, 0x1a0b1918
    v_mov_b32 v19, 0x180f1b1a
    v_lshlrev_b32 v16, 3, v16
    v_lshrrev_b64 v[16:17], v16, v[18:19]
    v_and_b32 v16, 255, v16
    v_bfe_u32 v17, v16, 1, 1
    v_xor_b32 v17, s95, v17
    v_lshl_add_u32 v17, v17, 6, v13
    v_lshl_add_u32 v{vPA+2}, v16, 7, v17
    v_xor_b32 v{vPA+3}, 64, v{vPA+2}
    s_lshl_b32 s96, s{sWQ}, 12
    s_add_u32 s96, s96, {exch}
    v_add_u32 v{vPX}, s96, v1
    s_xor_b32 s96, s{sWQ}, 2
    s_lshl_b32 s96, s96, 12
    s_add_u32 s96, s96, {exch}
    v_add_u32 v{vPX+1}, s96, v1
    v_and_b32 v12, 31, v0
    ''')
    if OPT['outco']:
        a(f'''
        v_bfe_u32 v13, v12, 1, 2
        v_lshlrev_b32 v13, 4, v13
        v_lshl_or_b32 v13, v14, 3, v13
        v_lshl_or_b32 v13, v12, 6, v13
        v_add_u32 v252, s96, v13
        v_lshrrev_b32 v12, 2, v0
        v_bfe_u32 v14, v0, 3, 2
        v_xor_b32 v14, v14, v0
        v_and_b32 v14, 3, v14
        ''')
    if br == 0:
        a('''
        v_and_b32 v13, 19, v12
        v_bfe_u32 v16, v12, 2, 1
        v_lshl_or_b32 v13, v16, 3, v13
        v_bfe_u32 v16, v12, 3, 1
        v_lshl_or_b32 v12, v16, 2, v13
        ''')
    a(f'''
    v_mul_u32_u24 v12, 1792, v12
    v_lshl_add_u32 v{vPO}, v14, 4, v12
    s_lshl1_add_u32 s96, s{sTB64}, s94
    s_mul_i32 s{sPO}, s96, {32*1792}
    s_lshl_b32 s98, s{sU}, 7
    s_add_u32 s{sPO}, s{sPO}, s98
    s_lshl_b32 s98, s95, 6
    s_add_u32 s{sPO}, s{sPO}, s98
    s_add_u32 s{sPO}, s{sPO}, {br*896}
    s_lshl1_add_u32 s99, s96, s95
    s_lshl_b32 s{sPL}, s99, 14
    s_add_u32 s{sPL}, s{sPL}, {OF + br*0x200000}
    ''')
    if br == 1: a(f's_lshl1_add_u32 s99, s{sTB64}, s95')
    elif OPT['wgf']: a(f's_lshr_b32 s99, s{sTB64}, 1\ns_lshl1_add_u32 s99, s99, s95')
    a(f's_lshl_b32 s99, s99, 10\ns_add_u32 s99, s99, {FOB if br else FOA}')
    a(f'v_lshlrev_b32 v{vPF}, {4 if (br == 0 and OPT["wgf"] == 2) else 7}, v0\nv_add_u32 v{vPF}, s99, v{vPF}')
def t_setup(s, role=0):
    if s == 0:
        srd(SWS, 22, WS_SIZE); srd(SDBG, 20, 256)
        if role == 0: a(f's_cmp_lg_u32 s2, {128 if OPT["rmap"] == 1 else 0}\ns_cbranch_scc1 L_noep\ns_mov_b32 s98, {EPOCH}\nbuffer_load_dwordx2 v[8:9], off, {WSR}, s98 sc1\nL_noep:')
        else: srd(SPHI, 14, 25088)
    if s == 1 and role == 0:
        a(f'''
        s_lshl3_add_u32 s98, s2, s{sW}
        s_cmp_lg_u32 s98, 4
        s_cbranch_scc1 L_notag
        v_add_u32 v8, 0x7f4a7c16, v8
        v_add_u32 v9, 0x9e3779b8, v9
        v_or_b32 v16, 1, v8
        v_or_b32 v17, 1, v9
        v_or_b32 v18, 1, v8
        v_or_b32 v19, 1, v9
        s_mov_b32 s98, {EPOCH}
        s_mov_b64 exec, 1
        buffer_store_dwordx4 v[16:19], off, s[{SDBG}:{SDBG+3}], 0 sc1
        buffer_store_dwordx4 v[16:19], off, {WSR}, s98 sc1
        s_mov_b64 exec, -1
        L_notag:
        ''')
    if s == 1 and role == 1:
        a(f'''
        s_mul_i32 s98, s{sGRP}, 3136
        s_lshl_b32 s99, s{sWQ}, 10
        s_add_u32 s98, s98, s99
        s_add_u32 m0, s99, {L_PHI}
        s_nop 0
        buffer_load_dwordx4 v1, s[{SPHI}:{SPHI+3}], s98 offen lds
        ''')
    if s == 2:
        srd(SOUT, 18, 3670016)
        job_ids()
        a(f'''
        s_lshl1_add_u32 s{sH}, s{sXC}, s{sROLE}
        v_mov_b32 v{vIDX}, 0xdddddddd
        s_lshl_b32 s{sT}, s{sXC}, 4
        s_lshl2_add_u32 s94, s{sWQ}, s{sT}
        s_add_u32 s{sT}, s{sT}, s{sQB}
        v_and_b32 v12, 3, v0
        v_lshrrev_b32 v13, 2, v0
        v_add_u32 v13, 1, v13
        v_lshl_add_u32 v12, v13, 7, v12
        v_add_u32 v{vFL}, s94, v12
        v_writelane_b32 v{vFL}, s{sT}, 8
        v_lshlrev_b32 v{vFL}, 7, v{vFL}
        ''')
    if s == 3:
        p3_setup(0, L_WOA, L_TX)
    if s == 4:
        for i in range(0, 64, 2): a(f'v_mov_b64 v[{vO+i}:{vO+i+1}], 0')
sKV, sQo = 70, 71
def last_setup():
    a(f'''
    s_lshl2_add_u32 s{sKV}, s{sH}, s{sWQ}
    s_lshl_b32 s{sKV}, s{sKV}, 16
    s_add_u32 s{sKV}, s{sKV}, {KVF}
    s_lshl4_add_u32 s{sQo}, s{sH}, s{sQB}
    s_lshl2_add_u32 s{sQo}, s{sQo}, s{sWQ}
    s_lshl_b32 s{sQo}, s{sQo}, 11
    s_add_u32 s{sQo}, s{sQo}, {QF}
    ''')
    a(f's_mov_b32 s77, {hex(f2u(-BIAS))}\ns_mov_b32 s78, {hex(QSCALE)}\ns_mov_b32 s79, 0xffff0000')
    assert not OPT['dyn']
    tag_word(12)
    a('v_mov_b32 v15, 1')
vRW, vRR, vQX = 4, 7, 8
def late_setup(role):
    keep = a.lines; a.lines = []
    t_setup(2)
    for j in range(4):
        a(f's_add_u32 s{sT+2}, s{sWQ}, {j+1}\ns_and_b32 s{sT+2}, s{sT+2}, 3')
        a(f's_lshl_b32 s76, s{sT+2}, 12\ns_add_u32 s76, s76, {L_RED + (j*16384 if j < 3 else 0)}\nv_add_u32 v{vRW+j}, s76, v1')
        a(f's_lshl_b32 s76, s{sT+2}, 11\ns_add_u32 s76, s76, {L_QX if role else L_RED}\nv_add_u32 v{vQX+j}, s76, v1')
    t_setup(3); t_setup(4)
    out = a.lines; a.lines = keep
    ren = {67: 4, 68: 5, 69: 6, 76: 7, 94: 10, 95: 11, 96: 12, 98: 13, 99: 3}
    return [re.sub(r'\bs(\d+)\b', lambda m: 's%d' % ren.get(int(m.group(1)), int(m.group(1))), l) for l in out]
heads = []; main_lines = a.lines
ORDER = (0, 1) if OPT['lay'] & 1 else (1, 0)
for role in ORDER:
    a.lines = []
    if role == ORDER[1]: a.label('L_ld' + 'AB'[role])
    late = late_setup(role)
    ld_head(role)
    seg = p1_segments(role)
    ops = [o for sg in seg for o in sg]
    ends = [sum(len(sg) for sg in seg[:k+1]) for k in range(len(seg))]
    pos = 0; cur = 0
    for k in range(len(seg)):
        if k == 1: t_setup(1, role)
        if OPT['womall'] >= 10 and k == OPT['womall'] - 10: srd(SWOA, 8, 401408); srd(SWOB, 16, 401408); wo_touch(132)
        tgt = min(len(ops), ends[k] + (OPT['look0'] if k == 0 else OPT['look']))
        first = True
        while pos < tgt and ops[pos][0] <= k + 1:
            st, op = ops[pos]
            if st > cur:
                if st == 6: a(f's_mov_b32 s{sW5}, s{sWo}')
                if st == 5 and OPT['qrot'] & 2:
                    a(f's_mov_b32 s{sCW}, 0')
                    for g in range(4 - role): w_group(role, g)
                p1_adv(); cur = st
            p1_op(role, st, op, first and k == 1, st < cur); first = False
            pos += 1
            if k >= OPT['tk0'] and OPT['tfill'] >> role & 1:
                for l in late[:OPT['tper']]: a(l)
                late = late[OPT['tper']:]
            if pos == ends[0]: stamp(12); t_setup(0, role)
            if pos == ends[0] + 2 and OPT['p0'] >> role & 1: a('s_setprio 0')
            if pos == len(ops): a(tag_load())
        if k == 0: stamp(13)
        if k < len(seg) - 1:
            a(f's_waitcnt vmcnt({pos - ends[k] + (pos == len(ops))})')
            if k == 0: stamp(14)
            if k == 4: stamp(15)
            a('s_barrier')
            if k == 0: stamp(1)
            if k == 0: cut = len(a.lines)
    R = 'AB'[role]
    if role:
        a(f'v_lshlrev_b32 v134, 2, v0\nv_add_u32 v134, {L_PAIR}, v134\nv_mov_b32 v135, 0\nds_write_b32 v134, v135')
    a(f'''
    s_mov_b32 s{sSPIN}, 0x40000
    L_tagwait{R}:
    s_waitcnt vmcnt(0)
    v_and_b32 v134, v{vTAG}, v{vTAG+1}
    v_bitop3_b32 v134, v134, v{vTAG+2}, v{vTAG+3} bitop3:0x80
    v_and_b32 v134, 1, v134
    v_cmp_ne_u32 vcc, 1, v134
    s_cbranch_vccz L_tagok{R}
    {tag_load()}
    s_sub_u32 s{sSPIN}, s{sSPIN}, 1
    s_cbranch_scc0 L_tagwait{R}
    s_waitcnt vmcnt(0)
    L_tagok{R}:
    ''')
    if role == 0: a('s_barrier')
    stamp(2)
    for l in late: a(l)
    last_setup()
    if OPT['watt'] == 1 and role == 0: warm('att')
    if OPT['watt'] != 2: a('s_waitcnt lgkmcnt(0)\ns_barrier')
    heads.append((a.lines[:cut], a.lines[cut:]))
a.lines = main_lines
if OPT['lay'] & 2:
    a.lines += heads[0][0] + ['s_branch L_ldC'] + heads[1][0] + heads[1][1] + ['s_branch L_ldE', 'L_ldC:'] + heads[0][1]
else: a.lines += heads[0][0] + heads[0][1] + ['s_branch L_ldE'] + heads[1][0] + heads[1][1]
a.label('L_ldE')
if OPT['watt'] == 2: warm('att'); a('s_waitcnt lgkmcnt(0)\ns_barrier')
if OPT['watt'] == 3: warm('att')
if OPT['mprio']: a('s_setprio 1')
kb = lambda kt: vKV + 16 * (kt % NB)
SB = lambda u: vS + 16 * (u % NS)
Q3 = vQ + 24
def kv_load(kt, c): a(f'buffer_load_dwordx4 {vr(kb(kt)+4*c,4)}, v1, {WSR}, s{sKV} offen offset:{1024*c} sc1')
def kv_next(kt): a(f's_add_u32 s{sKV}, s{sKV}, 4096')
def first_loads():
    for c in range(2): a(f'buffer_load_dwordx4 {vr(Q3+4*c,4)}, v1, {WSR}, s{sQo} offen offset:{1024*c} sc1')
    kv_load(0, 0); kv_load(0, 1)
def more_loads(lo, hi):
    for n in range(lo, hi):
        kv_load(n >> 2, n & 3)
        if n & 3 == 3: kv_next(n >> 2)
NINIT = 4 * (NB - 1)
if OPT['split']:
    poll(vFL, 0x101, 12, sleep=OPT['ps1'])
    stamp(3)
    first_loads()
    a(f'''
    s_mov_b64 exec, 0xfe
    buffer_load_dwordx2 v[12:13], v{vFL}, {WSR}, 0 offen sc1
    s_mov_b64 exec, -1
    s_waitcnt vmcnt(1)
    ''')
else:
    poll(vFL, 0x1ff, 12, sleep=OPT['ps1'])
    stamp(3)
    first_loads(); more_loads(2, 8)
    a('s_waitcnt vmcnt(6)')
a(f'{MF} {vr(vS,16)}, {vr(kb(0),4)}, {vr(Q3,4)}, 0')
a(f'{MF} {vr(vS,16)}, {vr(kb(0)+4,4)}, {vr(Q3+4,4)}, {vr(vS,16)}')
if OPT['split']:
    a(f'''
    s_waitcnt vmcnt(0)
    v_cmp_ne_u64 vcc, {vr(vTAG,2)}, v[12:13]
    s_nop 0
    s_and_b32 s72, vcc_lo, 0xfe
    s_cbranch_scc1 L_notyet
    ''')
    more_loads(2, 8)
    a.label('L_notyet')
vU = vS + 16
if OPT['qsc']:
    for c in range(2):
        for i in range(4*c, 4*c+4): a(f'v_lshlrev_b32 v{vU+2*i}, 16, v{Q3+i}\nv_and_b32 v{vU+2*i+1}, s79, v{Q3+i}')
        for i in range(8*c, 8*c+8): a(f'v_mul_f32 v{vU+i}, s78, v{vU+i}')
        for i in range(4*c, 4*c+4): a(f'v_cvt_pk_bf16_f32 v{Q3+i}, v{vU+2*i}, v{vU+2*i+1}')
        if c == 0: a(f'ds_write_b128 v{vQX+3}, {vr(Q3,4)}')
else:
    a(f'ds_write_b128 v{vQX+3}, {vr(Q3,4)}')
    if OPT['split']: a('s_nop 5')
    else: more_loads(8, NINIT); a('s_nop 0')
a(f'v_max3_f32 v12, v{vS}, v{vS+1}, v{vS+2}\nv_max3_f32 v13, v{vS+3}, v{vS+4}, v{vS+5}')
for i in range(6, 14, 4): a(f'v_max3_f32 v12, v12, v{vS+i}, v{vS+i+1}\nv_max3_f32 v13, v13, v{vS+i+2}, v{vS+i+3}')
a(f'''
v_max3_f32 v12, v12, v{vS+14}, v{vS+15}
v_max_f32 v12, v12, v13
v_mov_b32 v13, v12
s_nop 1
v_permlane32_swap_b32 v12, v13
s_mov_b32 exec_lo, 0
v_max_f32 v12, v12, v13
{'v_mul_f32 v12, s78, v12' if OPT['qsc'] else ''}
v_cvt_pk_bf16_f32 v{Q3+6}, -v12, s77
s_mov_b32 exec_lo, -1
ds_write_b128 v{vQX+3}, {vr(Q3+4,4)} offset:1024
''')
if OPT['split']:
    a('s_cmp_eq_u32 s72, 0\ns_cbranch_scc1 L_have')
    poll(vFL, 0xfe, 12, sleep=0)
    more_loads(2, 8)
    a.label('L_have')
if OPT['qsc'] or OPT['split']: more_loads(8, NINIT)
a('s_waitcnt lgkmcnt(0)')
stamp(10)
a('s_barrier')
for j in range(3):
    for c in range(2): a(f'ds_read_b128 {vr(vQ+8*j+4*c,4)}, v{vQX+j} offset:{1024*c}')
a(f'ds_write_b32 v{vRW+2}, v{vO} offset:3072')
for u in range(2):
    a(f's_waitcnt lgkmcnt({5-2*u})')
    a(f'{MF} {vr(SB(u),16)}, {vr(kb(0),4)}, {vr(vQ+8*u,4)}, 0')
    a(f'{MF} {vr(SB(u),16)}, {vr(kb(0)+4,4)}, {vr(vQ+8*u+4,4)}, {vr(SB(u),16)}')
a(f's_waitcnt vmcnt({4*(NB-2)}) lgkmcnt(0)')
a('s_barrier\ns_nop 5')
a('s_setprio 0')
stamp(4)
a('; WARMEND')
if OPT['watt']: a('; WARM att')
NKT = 16; NU = 4 * NKT
def E(u, lo, hi):
    for i in range(lo, hi): a(f'v_exp_f32 v{SB(u)+i}, v{SB(u)+i}')
def redw(j, q):
    a(f'ds_write_b128 v{vRW+j}, {vr(vO+16*j+4*q,4)} offset:{1024*q}')
LAST = OPT['last']; U0 = 4 * (NKT - LAST)
def unit(u):
    if u < U0: return u >> 2, u & 3
    return NKT - LAST + (u - U0) % LAST, (u - U0) // LAST
vm = Ctr('vmcnt')
for kt in range(1, NB - 1): vm.add(kt, 4)
wq_ = []
for u in range(NU):
    kt, j = unit(u)
    u2 = u + 2
    if u >= 2 and unit(u - 2)[0] == NKT - 1: wq_ += [(unit(u - 2)[1], q) for q in range(4)]
    nw = -(-len(wq_) // max(1, min(LAST, NU - u) - (u - U0 - 1) % LAST)) if wq_ else 0
    slots = {1: (0,), 2: (0, 2), 3: (0, 1, 2)}.get(nw, (0, 1, 2, 3) if nw else ())
    def W(k):
        if OPT['wrg'] > 1:
            for _ in range(OPT['wrg'] if k == 0 else 0):
                if wq_: redw(*wq_.pop(0))
        elif k in slots and wq_: redw(*wq_.pop(0))
    E(u, 0, 2)
    if u > 0: a(f'{SM} {vr(vO+16*unit(u-1)[1],16)}, {vr(kb(unit(u-1)[0])+12,4)}, {vr(SB(u-1)+8,8)}, v{vIDX}')
    if u < U0 and kt + NB - 1 < NKT and not OPT['nokv'] and j % OPT['ldg'] == 0:
        for c in range(j, j + OPT['ldg']): kv_load(kt + NB - 1, c); vm.add(kt + NB - 1)
    W(0)
    E(u, 2, 6)
    if u2 < NU: a(f'{MF} {vr(SB(u2),16)}, {vr(kb(unit(u2)[0]),4)}, {vr(vQ+8*unit(u2)[1],4)}, 0')
    if u < U0 and j == 3 and kt + NB < NKT: kv_next(kt + NB - 1)
    if u == OPT['go']: a(f'ds_write_b32 v{vRW+2}, v15 offset:3072')
    if u == NU - OPT['done']: a(f'ds_write_b32 v{vRW+2}, v{vIDX} offset:3072')
    W(1)
    E(u, 6, 10)
    a(f'{SM} {vr(vO+16*j,16)}, {vr(kb(kt)+8,4)}, {vr(SB(u),8)}, v{vIDX}')
    W(2)
    E(u, 10, 14)
    if u2 < NU: a(f'{MF} {vr(SB(u2),16)}, {vr(kb(unit(u2)[0])+4,4)}, {vr(vQ+8*unit(u2)[1]+4,4)}, {vr(SB(u2),16)}')
    if u + 3 < NU: vm.wait(unit(u + 3)[0])
    W(3)
    E(u, 14, 16)
if LAST == 1: wq_ += [(2, q) for q in range(4)]
assert OPT['done'] > LAST
if len(wq_) < 2: a('s_nop 1')
for w in wq_[:2]: redw(*w)
a(f'{SM} {vr(vO+48,16)}, {vr(kb(NKT-1)+12,4)}, {vr(SB(NU-1)+8,8)}, v{vIDX}')
for w in wq_[2:]: redw(*w)
a('; WARMEND')
sOo, sFo = 70, 71
if OPT['wtail']: a('; WARM tail')
a(f'''
s_lshl2_add_u32 s{sT}, s{sQB}, s{sWQ}
s_lshl4_add_u32 s{sT}, s{sT}, s{sH}
s_lshl_b32 s{sOo}, s{sT}, 11
s_add_u32 s{sOo}, s{sOo}, {OF}
''')
if OPT['wgf'] == 0: a(f's_lshl_b32 s{sFo}, s{sT}, 7')
if OPT['wgf'] == 1: a(f's_lshl4_add_u32 s{sFo}, s{sQB}, s{sH}\ns_lshl_b32 s{sFo}, s{sFo}, 7')
if OPT['wgf'] == 2: a(f's_lshr_b32 s{sT}, s{sH}, 3\ns_lshl1_add_u32 s{sT}, s{sQB}, s{sT}\ns_lshl_b32 s{sT}, s{sT}, 10\ns_and_b32 s{sFo}, s{sH}, 7\ns_lshl4_add_u32 s{sFo}, s{sFo}, s{sT}')
a(f'''
s_add_u32 s{sFo}, s{sFo}, {FOA}
s_mov_b32 s72, {hex(f2u(2.0**120))}
s_mov_b32 s73, {hex(f2u(2.0**(-BIAS-4)))}
s_mov_b32 s74, {hex(f2u(2.0**-106))}
s_waitcnt lgkmcnt(0)
''')
stamp(5)
if OPT['prio']: a('s_setprio 2')
if OPT['eflag'] == 4: setflag(sFo)
a('s_barrier')
stamp(11)
if OPT['eflag'] == 3:
    if OPT['wgf']: a(f's_cmp_eq_u32 s{sWQ}, 0\ns_cbranch_scc0 L_nofl')
    setflag(sFo, 1 if OPT['wgf'] == 2 else 0xff)
    a.label('L_nofl')
vA = vO + 48
vRD = 128 if NB == 5 else 112
vOP = 208
P3POLL = f's_mov_b64 exec, 0xff\nbuffer_load_dwordx2 v[14:15], v{vPF}, {WSR}, 0 offen sc1\ns_mov_b64 exec, -1'
QO = (3, 0, 1, 2)
for q in QO:
    for j in range(3): a(f'ds_read_b128 {vr(vRD+16*j+4*q,4)}, v{vRR} offset:{j*16384+q*1024}')
def rowsum():
    a(f'''
    v_mov_b32 v8, v{vA+12}
    v_mov_b32 v9, v{vA+12}
    s_nop 1
    v_permlane32_swap_b32 v8, v9
    v_rcp_f32 v10, v9
    ''')
for n, q in enumerate(QO):
    for j in range(3):
        if j != 1: a(f's_waitcnt lgkmcnt({(10 if j == 0 else 9)-3*n})')
        for e in (0, 2): a(f'v_pk_add_f32 {vr(vA+4*q+e,2)}, {vr(vA+4*q+e,2)}, {vr(vRD+16*j+4*q+e,2)}')
    if n == 0: rowsum()
a(f'v_mov_b64 v[12:13], 0\nds_write_b64 v{vRR}, v[12:13] offset:32768')
if OPT['eflag'] == 2: setflag(sFo)
a(f'v_maximum3_f32 v8, |v{vA}|, |v{vA+1}|, |v{vA+2}|')
for i in range(3, 11, 2): a(f'v_maximum3_f32 v8, |v{vA+i}|, |v{vA+i+1}|, v8')
a('v_cmp_ngt_f32 s[78:79], v8, s74')
for i in range(11, 15, 2): a(f'v_maximum3_f32 v8, |v{vA+i}|, |v{vA+i+1}|, v8')
a(f'v_maximum3_f32 v8, |v{vA+15}|, v9, v8')
a('v_cmp_nlt_f32 vcc, v8, s72\nv_cmp_ngt_f32 s[76:77], v9, s73')
def scale_pack():
    for i in range(0, 16, 2): a(f'v_pk_mul_f32 {vr(vA+i,2)}, {vr(vA+i,2)}, v[10:11] op_sel_hi:[1,0]')
    for i in (6, 7, 0, 1, 2, 3, 4, 5): a(f'v_cvt_pk_bf16_f32 v{vOP+i}, v{vA+2*i}, v{vA+2*i+1}')
    tag_pack(vOP)
scale_pack()
a('s_or_b64 vcc, vcc, s[76:77]\ns_or_b64 vcc, vcc, s[78:79]')
if OPT['force_fb']: a('s_mov_b64 vcc, 1')
a('s_cbranch_vccnz L_fallback')
a.label('L_ostore')
stamp(12)
if OPT['badtag']: setflag(sFo); a('s_sleep 60')
if OPT['eflag'] == 1: setflag(sFo)
for c in range(2):
    a(f'buffer_store_dwordx4 {vr(vOP+4*c,4)}, v1, {WSR}, s{sOo} offen offset:{1024*c} sc1')
    if OPT['badtag']: a('s_sleep 30')
if not OPT['badtag'] and not OPT['eflag']: setflag(sFo)
a('s_waitcnt lgkmcnt(0)\ns_barrier')
stamp(6)
a(f's_cmp_ge_u32 s{sI}, 28\ns_cbranch_scc1 L_fin')
sPend, sRdy, sNew, sLd, sHook, sPLh = 70, 71, 72, 73, 74, 76
def p3_sync(br):
    a(f'''
    s_lshl_b32 s82, s{sWQ}, 12
    s_add_u32 s82, s82, {L_SY + 4*br}
    v_mov_b32 v10, s82
    v_xor_b32 v11, 8192, v10
    ''')
def p3_bases():
    a(f's_mov_b32 s{sPLh}, s{sPL}')
    for i in range(1, 4): a(f's_add_u32 s{sPLh+i}, s{sPL}, {4096*i}')
def o_loads(h):
    for c in range(2): a(f'buffer_load_dwordx4 {vr(vOF+8*h+4*c,4)}, v1, {WSR}, s{sPLh+(h>>1)} offen offset:{2048*(h&1)+1024*c} sc1')
def wo_reads(h, c, W):
    for aa in (1, 0):
        for jj in range(2):
            if c and jj: a(f'ds_read_b64_tr_b16 {vr(W+4*aa+2*jj,2)}, v{vPA+2+aa} offset:{28*h*128}')
            else: a(f'ds_read_b64_tr_b16 {vr(W+4*aa+2*jj,2)}, v{vPA+aa} offset:{(28*h+16*c+8*jj)*128}')
p3_bases(); p3_sync(0)
a(f's_setprio {OPT["p3prio"]}')
a.label('L_p3_wait')
if OPT['opf']:
    a(f'''
    v_lshrrev_b32 v12, 3, v0
    v_mul_u32_u24 v12, 7, v12
    v_add_u32 v12, s{sU}, v12
    v_min_u32 v12, 15, v12
    v_and_b32 v13, 7, v0
    v_lshl_add_u32 v12, v13, 4, v12
    v_lshlrev_b32 v13, 7, v12
    s_movk_i32 s{sPend}, 0xff
    s_mov_b32 s{sSPIN}, 0x40000
    s_mov_b32 exec_hi, 0
    L_pw:
    s_movk_i32 exec_lo, 0xff
    buffer_load_dwordx2 v[14:15], v{vPF}, {WSR}, 0 offen sc1
    s_waitcnt vmcnt(0)
    v_cmp_ne_u64 vcc, {vr(vTAG,2)}, v[14:15]
    s_cbranch_vccz L_pwd
    s_andn2_b32 s{sRdy}, s{sPend}, vcc_lo
    s_cbranch_scc0 L_pwn
    s_mov_b32 s{sPend}, vcc_lo
    s_mul_i32 exec_lo, s{sRdy}, 0x10101
    buffer_load_dword v255, v13, {WSR}, s{sPL} offen sc1
    L_pwn:
    s_sub_u32 s{sSPIN}, s{sSPIN}, 1
    s_cbranch_scc0 L_pw
    L_pwd:
    s_mov_b64 exec, -1
    ''')
elif OPT['pp']: ppoll(vPF, 0xff, (4, 6, 8)[:OPT['pp'] // 10], OPT['pp'] % 10)
else: poll(vPF, 0xff, 14, sleep=OPT['psleep'])
stamp(7)
a(f's_mov_b32 s{sSPIN}, 0x40000\nL_p3_load:')
for h in range(8): o_loads(h)
a.label('L_p3')
if OPT['stamp'] == 3: stamp(13)
W4 = lambda n: vWF + 8 * (n & 3)
wo_reads(0, 0, W4(0)); wo_reads(0, 1, W4(1))
for n in range(16):
    t = vOF + 4 * n + 3
    if OPT['rtry']:
        if n % 2 == 0:
            a(f's_waitcnt vmcnt({14-n})\nL_pr{n//2}:\nv_xor_b32 v{t}, v{t}, v{vTW}\nv_xor_b32 v{t+4}, v{t+4}, v{vTW}')
            a(f'v_or_b32 v12, v{t}, v{t+4}\nv_cmp_lt_u32 vcc, 0xffff, v12\ns_cbranch_vccnz L_re{n//2}')
        a(f's_waitcnt lgkmcnt({4 if n < 15 else 0})')
    else:
        a(f's_waitcnt vmcnt({15-n})\nv_xor_b32 v{t}, v{t}, v{vTW}')
        a(f'v_or_b32 v12, v{t}, v{12 if n else t}\ns_waitcnt lgkmcnt({4 if n < 15 else 0})')
    a(f'{MF} {vr(vAC+16,16)}, {vr(W4(n)+4,4)}, {vr(vOF+4*n,4)}, {vr(vAC+16,16) if n else 0}')
    if n < 14: wo_reads((n + 2) >> 1, n & 1, W4(n + 2))
    if n == 15: a('s_nop 0' if OPT['rtry'] else 'v_cmp_lt_u32 vcc, 0xffff, v12')
    a(f'{MF} {vr(vAC,16)}, {vr(W4(n),4)}, {vr(vOF+4*n,4)}, {vr(vAC,16) if n else 0}')
a(f'''
{'s_nop 0' if OPT['rtry'] else 's_cbranch_vccnz L_p3_again'}
L_p3_fin:
v_xor_b32 v12, 16, v252
v_xor_b32 v13, 32, v252
v_xor_b32 v14, 48, v252
s_add_u32 s{sPL}, s{sPO}, {16*1792}
s_mov_b32 s{sSPIN}, 0x1000000
s_nop 3
''')
if OPT['stamp'] == 3: stamp(14)
for q in range(4): a(f'ds_write_b128 v{vPX}, {vr(vAC+16+4*q,4)} offset:{1024*q}')
a('ds_write_b32 v10, v10\nL_p3_x:\nds_read_b32 v15, v11')
for q in range(4): a(f'ds_read_b128 {vr(vOF+4*q,4)}, v{vPX+1} offset:{1024*q}')
a(f'''
s_waitcnt lgkmcnt(4)
v_cmp_ne_u32 vcc, 0, v15
s_cbranch_vccnz L_p3_xd
s_waitcnt lgkmcnt(0)
s_sub_u32 s{sSPIN}, s{sSPIN}, 1
s_cbranch_scc0 L_p3_x
L_p3_xd:
''')
if OPT['stamp'] == 3: stamp(15)
osc = ('', ' sc1', ' nt', ' sc1 nt')[OPT['outsc']]
for q in range(4):
    a(f's_waitcnt lgkmcnt({3-q})')
    for e in range(4): a(f'v_add_f32 v{vAC+4*q+e}, v{vAC+4*q+e}, v{vOF+4*q+e}')
    for i in range(2*q, 2*q+2): a(f'v_cvt_pk_bf16_f32 v{vWF+i}, v{vAC+2*i}, v{vAC+2*i+1}')
for q in range(4): a(f'ds_write_b64 v{(252, 12, 13, 14)[q]}, {vr(vWF+2*q,2)}')
a(f'''
ds_read_b128 {vr(vWF+8,4)}, v{vPX+1}
ds_read_b128 {vr(vWF+12,4)}, v{vPX+1} offset:1024
''')
if OPT['gdelay']:
    a(f'''
    s_cmp_ge_u32 s{sW}, 4
    s_cbranch_scc1 L_gst
    v_and_b32 v9, -8, v10
    s_mov_b32 s{sSPIN}, 0x100000
    L_gw:
    ds_read_b32 v15, v9
    s_waitcnt lgkmcnt(0)
    v_cmp_ne_u32 vcc, 0, v15
    s_cbranch_vccnz L_gst
    s_sleep 1
    s_sub_u32 s{sSPIN}, s{sSPIN}, 1
    s_cbranch_scc0 L_gw
    L_gst:
    ''')
a(f'''
s_waitcnt lgkmcnt(1)
buffer_store_dwordx4 {vr(vWF+8,4)}, v{vPO}, s[{SOUT}:{SOUT+3}], s{sPO} offen{osc}
s_waitcnt lgkmcnt(0)
buffer_store_dwordx4 {vr(vWF+12,4)}, v{vPO}, s[{SOUT}:{SOUT+3}], s{sPL} offen{osc}
''')
a.label('L_fin')
if OPT['stamp']:
    stamp(8)
    a('s_waitcnt vmcnt(0)')
    stamp(9)
    a(f's_lshl3_add_u32 s88, s2, s{sW}\ns_lshl_b32 s88, s88, 6\ns_add_u32 s88, s88, {STAMP}')
    a(f's_mov_b64 exec, 0xffff\nv_lshlrev_b32 v3, 2, v0\nbuffer_store_dword v254, v3, {WSR}, s88 offen\ns_mov_b64 exec, -1')
    if OPT['probe'] >= 0:
        a(f's_cmp_{"lt" if OPT["probeT"] else "ge"}_u32 s{sW}, 4\ns_cbranch_scc1 L_end')
        a(f's_cmp_lt_u32 s2, {OPT["pwlo"]}\ns_cbranch_scc1 L_end\ns_cmp_ge_u32 s2, {OPT["pwhi"]}\ns_cbranch_scc1 L_end')
        a(f'v_readlane_b32 s80, v254, {OPT["probe"]}\ns_nop 3\ns_cmp_eq_u32 s80, 0\ns_cbranch_scc1 L_end\ns_add_u32 s80, s80, 6000')
        a('L_probe:\ns_sleep 2\ns_memrealtime s[88:89]\ns_waitcnt lgkmcnt(0)\ns_sub_u32 s81, s88, s80\ns_cmp_lt_i32 s81, 0\ns_cbranch_scc1 L_probe')
a.label('L_end')
a('s_endpgm')
if OPT['rtry']:
    for h in range(8):
        a(f'L_re{h}:\ns_sub_u32 s{sSPIN}, s{sSPIN}, 1\ns_cbranch_scc1 L_giveup')
        o_loads(h)
        a(f's_waitcnt vmcnt(0)\ns_branch L_pr{h}')
    a('L_giveup:\ns_waitcnt vmcnt(0) lgkmcnt(0)\ns_branch L_p3_fin')
a(f'''
L_p3_again:
s_sub_u32 s{sSPIN}, s{sSPIN}, 1
s_cbranch_scc0 L_p3_load
s_branch L_p3_fin
''')

a.label('L_G')
if OPT['ipad'] == 1: ipad()
if OPT['ipad']: a('L_wipr:\ns_mov_b64 exec, -1')
ids()
vXR, vXR2, vWR, vWD, vONE = 4, 8, 208, 224, 228
vACC, vFR, vXL, vWL, vPK, vPH = 16, 112, 152, 184, 112, 232
sTH, sSG, sHB = 70, 71, 72
a(f'''
s_lshr_b32 s{sTH}, s{sWQ}, 1
s_and_b32 s{sSG}, s{sWQ}, 1
s_getpc_b64 s[76:77]
L_pc:
s_sub_u32 s76, s76, L_pc-{NAME}_kernel
s_subb_u32 s77, s77, 0
s_lshl2_add_u32 s{sT}, s{sI}, s{sWQ}
s_mulk_i32 s{sT}, 384
v_lshlrev_b32 v2, 7, v0
v_add_u32 v2, s{sT}, v2
v_min_u32 v2, L_code_end-{NAME}_kernel-4, v2
s_mov_b64 exec, 7
global_load_dword v255, v2, s[76:77]
s_mov_b64 exec, -1
v_and_b32 v14, 31, v0
v_lshrrev_b32 v15, 5, v0
v_bfe_u32 v2, v14, 1, 3
v_xor_b32 v2, v2, v15
v_lshlrev_b32 v2, 4, v2
v_lshl_or_b32 v2, v14, 7, v2
s_lshl_b32 s{sT}, s{sTH}, 13
s_add_u32 s{sT}, s{sT}, {L_RING}
v_add_u32 v{vXR}, s{sT}, v2
v_xor_b32 v{vXR+1}, 32, v{vXR}
v_xor_b32 v{vXR+2}, 64, v{vXR}
v_xor_b32 v{vXR+3}, 96, v{vXR}
v_add_u32 v{vXR2}, {2*STG}, v{vXR}
v_add_u32 v{vXR2+1}, {2*STG}, v{vXR+1}
v_add_u32 v{vXR2+2}, {2*STG}, v{vXR+2}
v_add_u32 v{vXR2+3}, {2*STG}, v{vXR+3}
v_bfe_u32 v2, v0, 2, 2
v_and_b32 v12, 3, v0
v_lshlrev_b32 v12, 3, v12
v_bfe_u32 v13, v0, 4, 1
v_lshl_or_b32 v3, v13, 5, v12
v_lshrrev_b32 v13, 1, v2
v_lshlrev_b32 v13, 6, v13
v_lshl_add_u32 v12, v15, 3, v2
v_lshlrev_b32 v12, 7, v12
v_add_u32 v12, {L_RING + 16384}, v12
''')
if OPT['zpad']:
    a('s_mov_b32 exec_lo, 0x88880000\ns_mov_b32 exec_hi, 0x88880000\nv_add_u32 v12, 0x30000, v12\ns_mov_b64 exec, -1')
a(f'''
s_mul_i32 s75, s{sSG}, 56
s_waitcnt lgkmcnt(0)
''')
if OPT['stamp']: a('v_writelane_b32 v254, s86, 0')
stamp(12)
srd(SWS, 22, WS_SIZE); srd(SOUT, 18, 3670016); srd(SWOA, 8, 401408); srd(SWOB, 16, 401408); srd(SDBG, 20, 256)
if OPT['tlb']:
    a(f'''
    v_lshlrev_b32 v14, {OPT['tlb']}, v0
    s_lshl_b32 s76, s{sWQ}, 22
    s_mov_b64 exec, {(1 << (1 << (22 - OPT['tlb']))) - 1 if OPT['tlb'] > 17 else -1}
    buffer_load_dword v255, v14, {WSR}, s76 offen
    buffer_load_dword v255, v14, s[{SOUT}:{SOUT+3}], s76 offen
    s_mov_b64 exec, -1
    ''')
if OPT['womall'] == 1: wo_touch(14)
job_ids()
a('v_mov_b32 v20, v12\nv_mov_b32 v21, v13')
p3_setup(1, L_WOB, L_GX)
a(f'''
v_mov_b32 v12, v20
v_mov_b32 v13, v21
v_lshrrev_b32 v16, 3, v0
v_and_b32 v17, 7, v0
v_bfe_u32 v18, v0, 4, 1
v_lshlrev_b32 v18, 2, v18
v_xor_b32 v17, v17, v18
v_mul_u32_u24 v16, 896, v16
v_lshl_add_u32 v{vWD}, v17, 4, v16
v_add_u32 v{vWD+1}, 6144, v{vWD}
v_add_u32 v{vWD+2}, 12288, v{vWD}
v_add_u32 v{vWD+3}, 18432, v{vWD}
v_mov_b64 v[{vONE}:{vONE+1}], 0
s_mov_b32 exec_lo, 0x10000000
s_mov_b32 exec_hi, 0x10000000
v_mov_b32 v{vONE}, 0x3f803f80
v_mov_b32 v{vONE+1}, 0x3f803f80
s_mov_b64 exec, -1
s_mov_b32 s100, 0xf0000000
s_mov_b32 s101, 0xf0000000
''')
a(f'''
s_lshl1_add_u32 s{sHB}, s{sGRP}, s{sSG}
s_cmp_eq_u32 s{sROLE}, 1
s_cbranch_scc1 L_GB
s_mul_i32 s76, s{sGRP}, 336
s_and_b32 s76, s76, 127
s_add_u32 s76, s76, s75
''')
for j in range(3):
    a(f'''
    v_add_u32 v14, s76, v3
    v_lshrrev_b32 v15, 7, v14
    v_and_b32 v14, 127, v14
    v_xor_b32 v14, v14, v13
    v_lshl_add_u32 v14, v15, 13, v14
    v_add_u32 v{vWR+j}, v12, v14
    v_add_u32 v{vWR+3+j}, {2*STG}, v{vWR+j}
    s_add_u32 s76, s76, 112
    ''')
a(f'''
v_and_b32 v2, 51, v0
v_bfe_u32 v3, v0, 2, 1
v_lshl_or_b32 v2, v3, 3, v2
v_bfe_u32 v3, v0, 3, 1
v_lshl_or_b32 v2, v3, 2, v2
v_lshlrev_b32 v14, 4, v2
s_mul_i32 s73, s{sGRP}, 6
s_add_u32 s73, s73, s{sSG}
s_lshl1_add_u32 s74, s{sTB}, s{sTH}
s_lshl_b32 s74, s74, 1
''')
for j in range(3):
    a(f'''
    s_add_u32 s82, s73, {2*j}
    s_and_b32 s83, s82, 15
    s_lshl_b32 s83, s83, 6
    s_add_u32 s83, s83, s74
    s_cmp_lt_u32 s82, 16
    s_cselect_b32 s97, 11, 12
    s_cselect_b32 s98, {QF >> 20}, {KVF >> 20}
    s_cselect_b32 s{94+j}, 0, 0x3f803f80
    s_lshl_b32 s83, s83, s97
    s_lshl_b32 s98, s98, 20
    s_add_u32 s{76+2*j}, s83, s98
    s_lshl_b32 s97, 1, s97
    s_add_u32 s{77+2*j}, s97, s{76+2*j}
    ''')
a(f'''
s_mov_b32 s98, {hex(QSCALE)}
s_mov_b32 s99, {hex(QSCALE)}
s_cmp_ge_u32 s{sGRP}, 6
s_cbranch_scc1 L_G_NNN
s_cmp_eq_u32 s{sGRP}, 5
s_cbranch_scc1 L_G_TNN
''')
vPI = 14
acc = lambda tt, j: vACC + 16 * (2 * j + tt)
xf = lambda b, tt: vFR + 20 * b + 4 * tt
wf = lambda b, j: vFR + 20 * b + 8 + 4 * j
def gemm(pat, order, fill, extra=None, tail_reads=None):
    lg = Ctr('lgkmcnt')
    isB = pat == 'TTN'
    def rd_x(n, tt, dst):
        if OPT['nolds']: return
        ks, k = n & 3, stg_slot(n >> 2)
        a(f'ds_read_b128 {vr(dst,4)}, v{(vXR2 if k == 2 else vXR)+ks} offset:{(k & 1) * STG + tt*4096}'); lg.add(('x', n))
    def rd_w(n, j, dst):
        if OPT['nolds']: return
        ks, k = n & 3, stg_slot(n >> 2)
        for jj in range(2):
            if isB: ad, off = vWR + 2 * k + (ks >> 1), j*12288 + (ks & 1)*2048 + jj*512
            else: ad, off = vWR + (3 if k == 2 else 0) + j, (k & 1) * STG + ks*2048 + jj*512
            a(f'ds_read_b64_tr_b16 {vr(dst+2*jj,2)}, v{ad} offset:{off}'); lg.add(('w', n, j))
    def mf(n, j, tt, X, W):
        A, B = (W, X) if pat[j] == 'T' else (X, W)
        if OPT['nomfma']: return
        a(f'{MF} {vr(acc(tt,j),16)}, {vr(A,4)}, {vr(B,4)}, {vr(acc(tt,j),16) if n else 0}')
    xl = lambda ks, tt: vXL + 8 * ks + 4 * tt
    wl = lambda p: vWL + 4 * (p % 4)
    if isB: blocks = [(1, 5, 1, 0), (1, 6, 1, 1), (0, 6, 0, 1), (0, 5, 1, 0), (2, 5, 0, 2), (2, 6, 1, 0)]; NMAIN = 20
    else: blocks = [(0, 6, 1, 0), (1, 6, 0, 1), (2, 6, 0, 2), (2, 5, 1, 0)]; NMAIN = 24
    pair = lambda p: (blocks[p >> 2][0], 4 * blocks[p >> 2][1] + (p & 3))
    def tail_rd(p):
        if p >= 4 * len(blocks): return
        j, n = pair(p)
        if p & 3 == 0 and blocks[p >> 2][3]:
            a('s_barrier')
            if blocks[p >> 2][3] == 2: a(tag_load())
        if blocks[p >> 2][2]: rd_x(n, 0, xl(p & 3, 0)); rd_x(n, 1, xl(p & 3, 1))
        rd_w(n, j, wl(p))
    stamp(13)
    a('s_barrier')
    stamp(1)
    rd_x(0, 0, xf(0,0)); rd_x(0, 1, xf(0,1))
    for j in order: rd_w(0, j, wf(0,j))
    for n in range(NMAIN):
        b = n & 1; nb = 1 - b
        js = order if n < 20 else order[:2]
        njs = order if n + 1 < 20 else order[:2]
        rds = [lambda: (rd_x(n+1, 0, xf(nb,0)), rd_x(n+1, 1, xf(nb,1)))] + [(lambda j=j: rd_w(n+1, j, wf(nb,j))) for j in njs]
        if n == NMAIN - 1: rds = [lambda: tail_rd(0), lambda: tail_rd(1)]
        bpos = (len(js) * 2 - OPT['bafter']) if (n & 3) == 3 else 1
        m = 0
        for j in js:
            lg.wait(('x', n), ('w', n, j))
            for tt in range(2):
                mf(n, j, tt, xf(b,tt), wf(b,j)); m += 1
                if m == bpos and (n & 3) == 3:
                    lg.wait(('w', n, js[-1])); a('s_barrier')
                if m >= bpos and rds:
                    rds.pop(0)()
                    if len(rds) > len(js) * 2 - m: rds.pop(0)()
        assert not rds
    q = []
    def drain(k):
        n = 0
        while q and n < k:
            g = q.pop(0); a(g); n += len([l for l in g.strip().split('\n') if l.strip()])
    def half(p, tt):
        j, n = pair(p)
        if tt == 0: lg.wait(('x', n), ('w', n, j))
        mf(n, j, tt, xl(p & 3, tt), wl(p))
    for p in range(8 if isB else 16):
        half(p, 0)
        if not (isB and p >= 6): tail_rd(p + 2)
        if tail_reads and p in tail_reads: tail_reads[p](lg)
        drain(OPT['nfill'] - 1)
        half(p, 1)
        drain(OPT['nfill'])
        if extra and p in extra: drain(999); extra[p](lg)
        if not OPT['p1only']: q += fill.get(p, [])
    stamp(2)
    if OPT['p1only']: a('s_branch L_fin')
    drain(999)
    return lg, half, tail_rd
def epiA(j, typ, mayq):
    g = ['s_nop 6' if j < 2 else 's_nop 10']
    P = vPK + 16 * (j & 1)
    for tt in range(2):
        A = acc(tt, j); p = P + 8 * tt
        for c in range(2):
            if typ == 'T' and mayq and not OPT['qsc']:
                L = a.newlabel('L_nq')
                if j == 2: mul = ''.join(f'v_pk_mul_f32 {vr(A+i,2)}, {vr(A+i,2)}, s[98:99]\n' for i in range(8*c, 8*c+8, 2))
                else: mul = ''.join(f'v_mul_f32 v{A+i}, s98, v{A+i}\n' for i in range(8*c, 8*c+8))
                g.append(f's_cmp_lg_u32 s{94+j}, 0\ns_cbranch_scc1 {L}\n' + mul + f'{L}:')
            for i in range(4*c, 4*c+4): g.append(f'v_cvt_pk_bf16_f32 v{p+i}, v{A+2*i}, v{A+2*i+1}')
            if typ == 'T':
                if c: g.append(f's_mov_b32 exec_lo, 0\nv_mov_b32 v{p+6}, s{94+j}\nv_mov_b32 v{p+7}, 0\ns_mov_b32 exec_lo, -1')
                g.append(f'buffer_store_dwordx4 {vr(p+4*c,4)}, v{vPI}, {WSR}, s{76+2*j+tt} offen offset:{1024*c} sc1')
            else:
                g.append(f's_mov_b64 exec, s[100:101]\nv_mov_b64 v[{p+4*c}:{p+4*c+1}], v[{vONE}:{vONE+1}]\nv_mov_b64 v[{p+4*c+2}:{p+4*c+3}], v[{vONE}:{vONE+1}]\ns_mov_b64 exec, -1')
                g.append(f'buffer_store_dwordx4 {vr(p+4*c,4)}, v1, {WSR}, s{76+2*j+tt} offen offset:{2048+1024*c} sc1')
    if OPT['stamp'] == 2:
        st = lambda i: f's_memrealtime s[88:89]\ns_waitcnt lgkmcnt(0)\nv_writelane_b32 v254, s88, {i}'
        k = [i for i, x in enumerate(g) if 'buffer_store' in x]
        if j == 0: g.insert(k[0], st(6))
        g.append(st((10, 15, 12)[j]))
    return g
for pat in ('TTT', 'TNN', 'NNN'):
    a.label('L_G_' + pat)
    gemm(pat, (0, 1, 2), {3: epiA(0, pat[0], pat == 'TTT'), 7: epiA(1, pat[1], pat == 'TTT'), 15: epiA(2, pat[2], pat == 'TTT')})
    if pat != 'NNN': a('s_branch L_GA_done')
def phq(op):
    a(f's_lshl4_add_u32 s80, s{sGRP}, s{sTB}\ns_lshl2_add_u32 s80, s80, s{sWQ}\ns_lshl_b32 s80, s80, 13\ns_add_u32 s80, s80, {PHQ}\ns_add_u32 s81, s80, 4096')
    for n in range(8):
        if op == 'load' and n % 2 == 0: a('s_waitcnt vmcnt(2)')
        a(f'buffer_{op}_dwordx4 {vr(acc(0,0)+4*n,4)}, v1, {WSR}, s{80+n//4} offen offset:{1024*(n%4)} sc1')
def go_wait():
    L = a.newlabel('L_go'); D = a.newlabel('L_god')
    a(f'''
    s_add_u32 s82, s{sWQ}, 3
    s_and_b32 s82, s82, 3
    s_lshl_b32 s82, s82, 12
    s_add_u32 s82, s82, {L_SY + 3072 + 512}
    v_mov_b32 v9, s82
    ''')
    if OPT['go'] < 0: return
    a(f'''
    s_movk_i32 s{sSPIN}, 64
    {L}:
    ds_read_b32 v13, v9
    s_waitcnt lgkmcnt(0)
    v_cmp_ne_u32 vcc, 0, v13
    s_cbranch_vccnz {D}
    s_sleep 3
    s_sub_u32 s{sSPIN}, s{sSPIN}, 1
    s_cbranch_scc0 {L}
    {D}:
    ''')
def ob_rows():
    vY = 112
    a(f'''
    s_lshl_b32 s79, s{sHB}, 10
    s_add_u32 s79, s79, {FKS}
    s_lshr_b32 s80, s{sTB}, {2 if OPT['rep4'] else 8}
    s_lshl_b32 s80, s80, 14
    s_add_u32 s79, s79, s80
    s_lshl_b32 s78, s{sHB}, 12
    s_add_u32 s78, s78, {KVS}
    ''')
    if OPT['smem'] & 1: spoll(79, 8)
    else: a('v_lshlrev_b32 v15, 7, v0\nv_add_u32 v15, s79, v15'); poll(15, 0xff, 2, sleep=OPT['ksleep'])
    stamp(15)
    for q in range(4): a(f'buffer_load_dwordx4 {vr(48+4*q,4)}, v1, {WSR}, s78 offen offset:{1024*q} sc1')
    if OPT['oba']: phq('load')
    a(f'''
    s_lshl1_add_u32 s83, s{sTB}, s{sTH}
    s_lshl_b32 s78, s83, 5
    s_add_u32 s78, s78, s{sHB}
    s_lshl_b32 s78, s78, 11
    s_add_u32 s78, s78, {OF + 0x200000}
    s_add_u32 s79, s78, 32768
    s_lshl4_add_u32 s82, s83, s{sHB}
    s_lshl_b32 s82, s82, 7
    s_add_u32 s82, s82, {FOB}
    s_waitcnt vmcnt(0)
    ''')
    for tt in range(2):
        for q in range(4):
            a(f'{MF} {vr(vY+16*tt,16)}, {vr(48+4*q,4)}, {vr(acc(tt,0)+4*q,4)}, {vr(vY+16*tt,16) if q else 0}')
    a('s_nop 7')
    for tt in range(2):
        N = vY + 16 * tt; p = 64 + 8 * tt
        a(f'''
        v_mov_b32 v4, v{N+12}
        v_mov_b32 v5, v{N+12}
        s_nop 1
        v_permlane32_swap_b32 v4, v5
        v_fmac_f32 v5, {hex(f2u(1e-6))}, v{230+tt}
        v_rcp_f32 v4, v5
        s_nop 0
        ''')
        for i in range(16): a(f'v_mul_f32 v{N+i}, v{N+i}, v4')
        for i in (6, 7, 0, 1, 2, 3, 4, 5): a(f'v_cvt_pk_bf16_f32 v{p+i}, v{N+2*i}, v{N+2*i+1}')
        tag_pack(p)
        for c in range(2): a(f'buffer_store_dwordx4 {vr(p+4*c,4)}, v1, {WSR}, s{78+tt} offen offset:{1024*c} sc1')
    if OPT['ack']: a('s_waitcnt vmcnt(0)')
    setflag(82)
a.label('L_GA_done')
a(f'''
s_mul_i32 s76, s{sGRP}, 48
s_add_u32 s76, s76, s{sTB}
s_lshl_b32 s76, s76, 7
v_lshrrev_b32 v2, 3, v0
v_and_b32 v3, 7, v0
v_lshlrev_b32 v3, 4, v3
v_lshl_add_u32 v2, v2, 11, v3
s_cmp_lg_u32 s{sW}, 0
s_waitcnt vmcnt(0)
s_barrier
s_cbranch_scc1 L_GA_nf
s_mov_b64 exec, {(0xffffff, 0x010101, 0x0f0f0f)[OPT['fdw']]}
buffer_store_dwordx4 {vr(vTAG,4)}, v2, {WSR}, s76 offen sc1
s_mov_b64 exec, -1
''')
a.label('L_GA_nf')
stamp(3)
def wo_part(lo, hi, pace=None):
    if lo >= hi or OPT['nowo']: return
    if pace is None: pace = OPT['pace']
    if lo == 0 and OPT['womall'] == 2: wo_touch(14); a('s_waitcnt vmcnt(0)')
    L = a.newlabel('L_nowo')
    a(f's_cmp_ge_u32 s{sI}, 28\ns_cbranch_scc1 {L}')
    a(f's_lshl_b32 s96, s{sU}, 7\ns_mul_i32 s94, s{sWQ}, {14*8*896}\ns_add_u32 s96, s96, s94\ns_mul_i32 s95, s{sWQ}, {14*1024}')
    for k in range(lo, hi):
        srdw, img, n = (SWOB, L_WOB, k) if k < 14 else (SWOA, L_WOA, k - 14)
        if n % 4 == 0 or k == lo:
            a(f's_add_u32 m0, s95, {img + (n & ~3)*1024}\ns_add_u32 s94, s96, {(n & ~3)*8*896}')
        a(f'buffer_load_dwordx4 v{vWD+n%4}, s[{srdw}:{srdw+3}], s94 offen offset:{1024*(n%4)} lds')
        a(f's_waitcnt vmcnt({pace})')
    a.label(L)
tag_word(2)
wo_part(0, OPT['woe'], OPT['pace0'])
stamp(15)
a('s_barrier\ns_barrier')
if OPT['gidle']: a('s_branch L_fin')
WA1 = min(28, OPT['woe'] + OPT['wo1'])
wo_part(OPT['woe'], WA1)
a(f's_cmp_lg_u32 s{sW}, 0\ns_cbranch_scc1 L_GA_wo')
a(f'''
s_lshl4_add_u32 s76, s{sGRP}, s{sTB}
s_lshr_b32 s77, s76, 2
s_lshl_b32 s78, s77, 11
s_add_u32 s80, s78, {FKV}
s_lshl_b32 s82, s76, 7
s_add_u32 s82, s82, {FKS}
s_lshl_b32 s78, s77, 16
s_and_b32 s79, s76, 3
s_lshl_b32 s79, s79, 10
s_add_u32 s78, s78, s79
s_add_u32 s78, s78, {PART}
''')
if OPT['smem'] & 2: spoll(80, 16)
else: a('v_lshlrev_b32 v15, 7, v0\nv_add_u32 v15, s80, v15'); poll(15, 0xffff, 2, sleep=OPT['gsleep'])
stamp(4)
for p in range(16):
    a(f'buffer_load_dwordx4 {vr(16+4*p,4)}, v1, {WSR}, s78 offen sc1')
    if p < 15: a('s_add_u32 s78, s78, 4096')
    if OPT['rpace'] and p >= OPT['rpace']: a(f's_waitcnt vmcnt({OPT["rpace"]})')
a(f'''
s_lshr_b32 s78, s76, 1
s_lshl_b32 s78, s78, 10
s_and_b32 s79, s76, 1
s_lshl3_add_u32 s78, s79, s78
s_add_u32 s78, s78, {KVS}
''')
for p in range(1, 16):
    if p % 4 == 1: a(f's_waitcnt vmcnt({max(0, 15-(p+3))})')
    for e in range(4): a(f'v_add_f32 v{16+e}, v{16+e}, v{16+4*p+e}')
a(f'''
v_cvt_pk_bf16_f32 v16, v16, v17
v_cvt_pk_bf16_f32 v17, v18, v19
buffer_store_dwordx2 v[16:17], v1, {WSR}, s78 offen sc1
v_lshrrev_b32 v6, 3, v0
v_and_b32 v7, 127, v1
v_lshl_add_u32 v6, v6, 14, v7
s_waitcnt vmcnt(0)
''')
a(f's_mov_b32 exec_hi, 0\ns_mov_b32 exec_lo, {0x0f0f0f0f if OPT["fl64"] else -1}\nbuffer_store_dwordx4 {vr(vTAG,4)}, v6, {WSR}, s82 offen sc1\ns_mov_b64 exec, -1')
stamp(5)
a.label('L_GA_wo')
if OPT['oba']:
    wo_part(WA1, OPT['wo2']); stamp(14); ob_rows(); stamp(6); wo_part(max(WA1, OPT['wo2']), 28)
else:
    wo_part(WA1, OPT['woA'])
    if OPT['gopos']: go_wait()
    wo_part(max(WA1, OPT['woA']), 28, OPT['pace3'])
a('s_branch L_G_p3')

a.label('L_GB')
a(f'''
s_mul_i32 s76, s{sGRP}, 112
s_and_b32 s76, s76, 127
s_lshr_b32 s77, s76, 6
s_add_u32 s76, s76, s75
v_add_u32 v14, s76, v3
v_lshrrev_b32 v16, 7, v14
v_xor_b32 v16, s77, v16
v_cmp_eq_u32 vcc, 0, v16
v_and_b32 v17, 127, v14
v_and_b32 v18, 63, v14
v_add_u32 v18, 8192, v18
v_cndmask_b32 v14, v18, v17, vcc
v_xor_b32 v14, v14, v13
v_mov_b32 v17, 4096
v_cndmask_b32 v17, 64, v17, vcc
v_xor_b32 v17, v17, v14
v_add_u32 v{vWR}, v12, v14
v_add_u32 v{vWR+1}, v12, v17
v_add_u32 v{vWR+2}, {STG}, v{vWR}
v_add_u32 v{vWR+3}, {STG}, v{vWR+1}
v_add_u32 v{vWR+4}, {2*STG}, v{vWR}
v_add_u32 v{vWR+5}, {2*STG}, v{vWR+1}
v_lshl_add_u32 v2, v15, 2, v2
v_mul_u32_u24 v14, 56, v2
v_min_u32 v16, 48, v3
s_mul_i32 s76, s{sSG}, 1568
v_add3_u32 v14, v14, v16, s76
s_mov_b32 s76, {hex(f2u(LOG2E))}
s_mov_b32 s77, {hex(f2u(LOG2E))}
''')
vEP, vEN, vKA, vTR, vVO = 112, 128, 144, 48, 160
vMX = 216
vPW, vPR, vVW, vSP, vINF = 200, 204, 214, 230, 15
assert L_PK % 8192 == 0
a(f'''
s_lshl_b32 s78, s{sSG}, 14
s_add_u32 s78, s78, {L_PK}
s_lshl_b32 s79, s{sTH}, 12
v_and_b32 v16, 31, v0
v_bfe_u32 v17, v16, 1, 3
v_xor_b32 v17, v17, v15
v_lshlrev_b32 v17, 3, v17
v_lshl_or_b32 v17, v16, 6, v17
s_add_u32 s80, s78, s79
v_add_u32 v{vPW}, s80, v17
v_xor_b32 v{vPW+1}, 16, v{vPW}
v_xor_b32 v{vPW+2}, 32, v{vPW}
v_xor_b32 v{vPW+3}, 48, v{vPW}
v_lshrrev_b32 v16, 1, v2
v_lshlrev_b32 v16, 3, v16
v_xor_b32 v16, v16, v3
v_lshl_or_b32 v16, v2, 6, v16
s_lshl1_add_u32 s80, s79, s78
s_add_u32 s81, s80, s79
v_add_u32 v{vPR}, s81, v16
v_xor_b32 v{vPR+1}, 32, v{vPR}
v_xor_b32 v{vPR+2}, 4096, v{vPR}
v_xor_b32 v{vPR+3}, 32, v{vPR+2}
s_lshl_b32 s80, s{sWQ}, 12
s_add_u32 s80, s80, {L_VX}
v_add_u32 v{vVW}, s80, v1
s_xor_b32 s80, s{sWQ}, 2
s_lshl_b32 s80, s80, 12
s_add_u32 s80, s80, {L_VX}
v_add_u32 v{vVW+1}, s80, v1
s_lshl_b32 s80, s{sWQ}, 2
s_add_u32 s80, s80, {L_PAIR}
v_mov_b32 v12, s80
v_xor_b32 v13, 8, v12
v_mul_u32_u24 v{vINF}, 255, v15
v_lshlrev_b32 v{vINF}, 23, v{vINF}
s_lshl1_add_u32 s78, s{sHB}, s{sTH}
s_lshl4_add_u32 s78, s78, s{sTB}
s_lshl_b32 s82, s78, 7
s_add_u32 s82, s82, {FKV}
s_lshl_b32 s78, s78, 12
s_add_u32 s78, s78, {PART}
''')
def phi_reads(lg):
    for c in range(2):
        for jj in range(2):
            a(f'ds_read_b64_tr_b16 {vr(vPH+4*c+2*jj,2)}, v14 offset:{L_PHI + (16*c+8*jj)*56}'); lg.add('phi')
def phi_fix(lg):
    lg.wait('phi')
    a(f's_mov_b32 exec_lo, 0\nv_mov_b64 v[{vPH+6}:{vPH+7}], 0\ns_mov_b32 exec_lo, -1')
def pack_proj(j):
    for tt in range(2):
        Y = acc(tt, j); p = vPK + 8 * tt
        for i in range(8): a(f'v_cvt_pk_bf16_f32 v{p+i}, v{Y+2*i}, v{Y+2*i+1}')
        a(f'{MF} {vr(Y,16)}, {vr(vPH,4)}, {vr(p,4)}, 0\ns_nop 0')
        a(f'{MF} {vr(Y,16)}, {vr(vPH+4,4)}, {vr(p+4,4)}, {vr(Y,16)}')
def f_minmax(j):
    g = []
    for tt in range(2):
        Y = acc(tt, j); m = vMX + 4 * tt
        g += [f'v_max3_f32 v{m}, v{Y}, v{Y+1}, v{Y+2}', f'v_min3_f32 v{m+2}, v{Y}, v{Y+1}, v{Y+2}']
        for i in range(3, 15, 2): g += [f'v_max3_f32 v{m}, v{m}, v{Y+i}, v{Y+i+1}', f'v_min3_f32 v{m+2}, v{m+2}, v{Y+i}, v{Y+i+1}']
        g += [f'v_max_f32 v{m}, v{m}, v{Y+15}', f'v_min_f32 v{m+2}, v{m+2}, v{Y+15}']
    m = vMX
    g += f'''s_nop 0
    v_permlane32_swap_b32 v{m}, v{m+4}
    v_permlane32_swap_b32 v{m+2}, v{m+6}
    v_max_f32 v{m}, v{m}, v{m+4}
    v_min_f32 v{m+2}, v{m+2}, v{m+6}
    v_mul_f32 v{m+4}, s76, v{m}
    v_mul_f32 v{m}, s76, v{m}
    v_mul_f32 v{m+6}, s76, v{m+2}
    v_mul_f32 v{m+2}, s76, v{m+2}
    v_permlane32_swap_b32 v{m}, v{m+4}
    v_add_f32 v{m+1}, v{m}, v{vINF}
    v_permlane32_swap_b32 v{m+2}, v{m+6}
    v_add_f32 v{m+5}, v{m+4}, v{vINF}
    v_sub_f32 v{m+3}, v{m+2}, v{vINF}
    v_sub_f32 v{m+7}, v{m+6}, v{vINF}'''.split('\n')
    return g
def f_soft(Y, m, mix=None, keep=None, pre=None, mid=None, first=0):
    for i in range(0, 16, 2):
        sel = 'op_sel:[0,0,1] op_sel_hi:[1,1,1]' if i >= 12 else 'op_sel_hi:[1,1,0]'
        a(f'v_pk_fma_f32 {vr(vEP+i,2)}, {vr(Y+i,2)}, s[76:77], v[{m}:{m+1}] {sel} neg_lo:[0,0,1] neg_hi:[0,0,1]')
        a(f'v_pk_fma_f32 {vr(vEN+i,2)}, {vr(Y+i,2)}, s[76:77], v[{m+2}:{m+3}] {sel} neg_lo:[1,0,0] neg_hi:[1,0,0]')
    if pre: pre()
    assert vEN == vEP + 16
    for i in range(32):
        if mix and i >= first and (i - first) % 3 == 0 and i - first < 24: mix((i - first) // 3)
        a(f'v_exp_f32 v{vEP+i}, v{vEP+i}')
    if keep:
        for i in range(8): a(f'v_cvt_pk_bf16_f32 v{Y+i}, v{vEP+2*i}, v{vEP+2*i+1}')
    if mid: mid()
    a(f'v_pk_add_f32 v[{m}:{m+1}], {vr(vEP,2)}, {vr(vEP+2,2)}\nv_pk_add_f32 v[{m+2}:{m+3}], {vr(vEN,2)}, {vr(vEN+2,2)}')
    for i in range(4, 16, 2): a(f'v_pk_add_f32 v[{m}:{m+1}], v[{m}:{m+1}], {vr(vEP+i,2)}\nv_pk_add_f32 v[{m+2}:{m+3}], v[{m+2}:{m+3}], {vr(vEN+i,2)}')
    a(f'''
    v_add_f32 v{m}, v{m}, v{m+1}
    v_add_f32 v{m+2}, v{m+2}, v{m+3}
    s_nop 1
    v_permlane32_swap_b32 v{m}, v{m+2}
    ''')
    if keep:
        a(f'''
        v_add_f32 v{keep}, v{m}, v{m+2}
        v_add_f32 v{m+2}, v{m}, v{m+2}
        s_nop 1
        v_permlane32_swap_b32 v{keep}, v{m+2}
        v_rcp_f32 v{m+2}, v{m+2}
        s_nop 0
        v_mul_f32 v{m+2}, v{m+2}, v{keep}
        ''')
    else:
        a(f'''
        v_add_f32 v{m}, v{m}, v{m+2}
        v_rcp_f32 v{m}, v{m}
        s_nop 0
        v_mov_b32 v{m+2}, v{m}
        s_nop 1
        v_permlane32_swap_b32 v{m}, v{m+2}
        ''')
        for i in range(0, 16, 2): a(f'v_pk_mul_f32 {vr(vEP+i,2)}, {vr(vEP+i,2)}, v[{m}:{m+1}] op_sel_hi:[1,0]')
    for i in range(0, 16, 2): a(f'v_pk_mul_f32 {vr(vEN+i,2)}, {vr(vEN+i,2)}, v[{m+2}:{m+3}] op_sel_hi:[1,0]')
    if not keep:
        for i in range(8): a(f'v_cvt_pk_bf16_f32 v{Y+i}, v{vEP+2*i}, v{vEP+2*i+1}')
    for i in range(8): a(f'v_cvt_pk_bf16_f32 v{Y+8+i}, v{vEN+2*i}, v{vEN+2*i+1}')
lg, half, tail_rd = gemm('TTN', (1, 0, 2), {}, extra={7: phi_fix}, tail_reads={4: phi_reads})
def vmix(p0, stop=99):
    def f(k):
        half(p0 + (k >> 1), k & 1)
        if k & 1 == 0 and p0 + (k >> 1) + 2 < stop: tail_rd(p0 + (k >> 1) + 2)
    return f
a('s_nop 7')
pack_proj(1)
a('s_nop 0')
g = f_minmax(1)
for l in g[:32]: a(l)
if OPT['stamp'] == 5: stamp(6)
tail_rd(8); tail_rd(9)
for l in g[32:]: a(l)
if OPT['stamp'] == 5: stamp(7)
for tt in range(2):
    K = acc(tt, 1)
    f_soft(K, vMX + 4 * tt, vmix(8 + 4 * tt, 16))
    if OPT['stamp'] == 5: stamp(11 + tt)
    if tt: tail_rd(16); tail_rd(17)
    for s in range(2):
        for g4 in range(4): a(f'ds_write_b64 v{vPW+g4}, {vr(K+8*s+2*g4,2)} offset:{8192*s+2048*tt}'); lg.add('pk')
stamp(3)
pack_proj(0)
g = f_minmax(0); mx = vmix(16)
for k in range(8):
    mx(k)
    for l in g[:5 if k else 1]: a(l)
    g = g[5 if k else 1:]
for l in g: a(l)
if OPT['stamp'] == 5: stamp(14)
def v_out():
    for tt in range(2):
        V = acc(tt, 2)
        for i in range(8): a(f'v_cvt_pk_bf16_f32 v{V+i}, v{V+2*i}, v{V+2*i+1}')
        a('s_mov_b64 exec, s[100:101]')
        for i in range(0, 8, 2): a(f'v_mov_b64 v[{V+i}:{V+i+1}], v[{vONE}:{vONE+1}]')
        a('s_mov_b64 exec, -1')
        for m in range(2): a(f'ds_write_b128 v{vVW}, {vr(V+4*m,4)} offset:{2048*tt+1024*m}')
    a('ds_write_b32 v12, v12')
f_soft(acc(0, 0), vMX, vmix(20), keep=vSP, mid=v_out)
if OPT['stamp'] == 5: stamp(15)
lg = Ctr('lgkmcnt')
def kv_reads(o, tt):
    for m in range(2):
        for jj in range(2):
            a(f'ds_read_b64_tr_b16 {vr(vTR+16*o+8*tt+4*m+2*jj,2)}, v{vPR+2*o+jj} offset:{2048*tt+1024*m+512*jj}'); lg.add((o, tt, m))
        if o: a(f'ds_read_b128 {vr(vVO+8*tt+4*m,4)}, v{vVW+1} offset:{2048*tt+1024*m}'); lg.add((o, tt, m))
a(f's_mov_b32 s{sSPIN}, 0x400000\nds_read_b32 v2, v13')
kv_reads(0, 0); kv_reads(0, 1)
def pair_wait():
    a(f'''
    L_pair:
    s_waitcnt lgkmcnt(0)
    v_cmp_ne_u32 vcc, 0, v2
    s_cbranch_vccnz L_paird
    ds_read_b32 v2, v13
    s_sub_u32 s{sSPIN}, s{sSPIN}, 1
    s_cbranch_scc0 L_pair
    s_waitcnt lgkmcnt(0)
    L_paird:
    ''')
    lg.q = []
    kv_reads(1, 0); kv_reads(1, 1)
def kvmix(k):
    o, tt, m = k >> 2, (k >> 1) & 1, k & 1
    lg.wait((o, tt, m))
    Vf = (acc(tt, 2) + 4 * m) if o == 0 else (vVO + 8 * tt + 4 * m)
    a(f'{MF} {vr(vKA,16)}, {vr(vTR+16*o+8*tt+4*m,4)}, {vr(Vf,4)}, {vr(vKA,16) if k else 0}')
def kv_store():
    for q in range(4): a(f'buffer_store_dwordx4 {vr(vKA+4*q,4)}, v1, {WSR}, s78 offen offset:{1024*q} sc1')
    stamp(10)
def kvmix2(k):
    kvmix(k)
    if OPT['b8e'] == 2 and k == 7: a('s_barrier')
    if OPT['b8e'] == 3 and k == 3: a('s_barrier')
f_soft(acc(1, 0), vMX + 4, kvmix2, keep=vSP + 1, pre=pair_wait, mid=(lambda: a('s_barrier')) if OPT['b8e'] == 1 else None)
assert OPT['kvst'] and not OPT['oba']
if OPT['kvst'] == 1: kv_store()
stamp(4)
if not OPT['b8e']:
    a('s_barrier')
    if OPT['kvst'] == 2: kv_store()
a('s_barrier')
if (OPT['b8e'] and OPT['kvst'] == 2) or OPT['kvst'] == 3: kv_store()
if OPT['oba']: phq('store')
a('s_waitcnt vmcnt(0)')
setflag(82)
tag_word(2)
stamp(5)
if OPT['gidle']: a('s_branch L_fin')
wo_part(0, OPT['wo2'])
stamp(14)
if not OPT['oba']: ob_rows()
stamp(6)
if OPT['gopos']: go_wait()
wo_part(OPT['wo2'], 28, OPT['pace3'])
a.label('L_G_p3')
a(f's_cmp_ge_u32 s{sI}, 28\ns_cbranch_scc1 L_fin')
stamp(12)
if not OPT['gopos']: go_wait()
a(f'''
''')
p3_bases(); p3_sync(1)
a(f'''
s_mov_b32 s{sSPIN}, 0x40000
L_ob_try:
s_mov_b64 exec, 0xff
buffer_load_dwordx2 v[14:15], v{vPF}, {WSR}, 0 offen sc1
ds_read_b32 v13, v9
s_waitcnt vmcnt(0) lgkmcnt(0)
v_cmp_ne_u64 vcc, {vr(vTAG,2)}, v[14:15]
v_cmp_lt_u32 s[82:83], 1, v13
s_mov_b64 exec, -1
s_cbranch_vccz L_ob_early
s_cmp_lg_u32 s82, 0
s_cbranch_scc1 L_ob_late
s_sleep {OPT['gsleep']}
s_sub_u32 s{sSPIN}, s{sSPIN}, 1
s_cbranch_scc0 L_ob_try
L_ob_late:
s_barrier
s_barrier
''')
a('s_branch L_p3_wait\nL_ob_early:')
stamp(7)
for h in range(0 if OPT['noload'] else 8): o_loads(h)
stamp(11)
a('s_barrier\ns_barrier\ns_branch L_p3')

a('; WARMEND')
a.label('L_code_end')
a.label('L_fallback')
a(f'''
s_mov_b32 exec_lo, 0
v_mov_b32 v{Q3+6}, 0
s_mov_b32 exec_lo, -1
s_lshl_b32 s76, s{sH}, 18
s_add_u32 s76, s76, {KVF}
s_mov_b32 s77, s76
s_add_u32 s78, s76, {64*4096}
v_mov_b32 v12, 0xff800000
''')
a.label('L_fb1')
a(f'''
buffer_load_dwordx4 {vr(vKV,4)}, v1, {WSR}, s77 offen sc1
buffer_load_dwordx4 {vr(vKV+4,4)}, v1, {WSR}, s77 offen offset:1024 sc1
s_waitcnt vmcnt(0)
{MF} {vr(vS,16)}, {vr(vKV,4)}, {vr(Q3,4)}, 0
{MF} {vr(vS,16)}, {vr(vKV+4,4)}, {vr(Q3+4,4)}, {vr(vS,16)}
s_nop 11
''')
for i in range(0, 16, 2): a(f'v_max3_f32 v12, v12, v{vS+i}, v{vS+i+1}')
a(f'''
s_add_u32 s77, s77, 4096
s_cmp_lt_u32 s77, s78
s_cbranch_scc1 L_fb1
v_mov_b32 v13, v12
s_nop 1
v_permlane32_swap_b32 v12, v13
v_max_f32 v12, v12, v13
''')
for i in range(0, 16, 2): a(f'v_mov_b64 v[{vA+i}:{vA+i+1}], 0')
a.label('L_fb2')
for c in range(4): a(f'buffer_load_dwordx4 {vr(vKV+4*c,4)}, v1, {WSR}, s76 offen offset:{1024*c} sc1')
a(f'''
s_waitcnt vmcnt(0)
{MF} {vr(vS,16)}, {vr(vKV,4)}, {vr(Q3,4)}, 0
{MF} {vr(vS,16)}, {vr(vKV+4,4)}, {vr(Q3+4,4)}, {vr(vS,16)}
s_nop 11
''')
for i in range(16): a(f'v_sub_f32 v{vS+i}, v{vS+i}, v12')
for i in range(16): a(f'v_exp_f32 v{vS+i}, v{vS+i}')
a(f'''
s_nop 1
{SM} {vr(vA,16)}, {vr(vKV+8,4)}, {vr(vS,8)}, v{vIDX}
{SM} {vr(vA,16)}, {vr(vKV+12,4)}, {vr(vS+8,8)}, v{vIDX}
s_add_u32 s76, s76, 4096
s_cmp_lt_u32 s76, s78
s_cbranch_scc1 L_fb2
s_nop 11
''')
rowsum()
a('s_nop 0')
scale_pack()
a('s_branch L_ostore')

if OPT['wtail'] or OPT['wpre'] or OPT['watt']:
    a.lines, cnt = insert_warm_chains(a.lines, OPT['wsp'])
a.lines = [l for l in a.lines if not l.startswith('; WARM')]
if OPT['align']:
    a.lines, nfix = align_runs(a.lines)
bad = check_hazards(a.lines)
for b in bad[:10]: print('HAZARD', b, file=sys.stderr)
import re
for l in a.lines:
    m = re.search(r'lgkmcnt\((\d+)\)', l)
    assert not (m and int(m.group(1)) > 15), l

hdr = open('cdna_kernels/' + NAME + '.s.ref').read().split('; @launch')[0]
out = hdr + '; @launch grid=(256,1,1) block=(512,1,1) lds=163840\n'
out += f'''.amdgcn_target "amdgcn-amd-amdhsa--gfx950"
.text
.globl {NAME}_kernel
.p2align 8
.type {NAME}_kernel,@function
''' + a.text() + f'''.section .rodata,"a"
.p2align 6
.amdhsa_kernel {NAME}_kernel
  .amdhsa_next_free_vgpr 256
  .amdhsa_next_free_sgpr 102
  .amdhsa_accum_offset 256
  .amdhsa_group_segment_fixed_size 0
  .amdhsa_kernarg_size 80
  .amdhsa_user_sgpr_count 2
  .amdhsa_user_sgpr_kernarg_segment_ptr 1
  .amdhsa_system_sgpr_workgroup_id_x 1
.end_amdhsa_kernel
'''
open(sys.argv[1], 'w').write(out)
```
